```python
import torch

def _softmax(x, axis=-1):
    return torch.softmax(x, dim=axis)

def _gelu(x):
    return torch.nn.functional.gelu(x, approximate='tanh')

def _silu(x):
    return torch.nn.functional.silu(x)

def _sigmoid(x):
    return torch.sigmoid(x)

def _layernorm(x, axis=-1, eps=1e-05):
    m = x.mean(dim=axis, keepdim=True)
    v = x.var(dim=axis, keepdim=True, unbiased=False)
    return (x - m) / torch.sqrt(v + eps)

def _scatter_add(tgt, idx, src, axis=0):
    return tgt.clone().index_add_(axis, idx, src)

def _segment_sum(src, seg, n):
    out = torch.zeros((n,) + src.shape[1:], dtype=src.dtype)
    return out.index_add_(0, seg, src)

def _pad(x, pw):
    flat = tuple((v for pair in reversed(pw) for v in pair))
    return torch.nn.functional.pad(x, flat)
kernel_name = 'standalone__video_timesformer__vision'

def setup_inputs():

    _w = lambda a: (lambda t: t.to(torch.bfloat16) if t.is_floating_point() else t)(torch.as_tensor(a))
    T = 7
    p = 14
    HW = 384 // p * p
    N = (HW // p) ** 2
    C = 192
    return {'x': _w((lambda *s: torch.randn(*s, dtype=torch.bfloat16) * 0.05)(1, T, N, C)), 'wqkv_t': _w((lambda *s: torch.randn(*s, dtype=torch.bfloat16) * 0.05)(C, 3 * C)), 'wo_t': _w((lambda *s: torch.randn(*s, dtype=torch.bfloat16) * 0.05)(C, C)), 'wqkv_s': _w((lambda *s: torch.randn(*s, dtype=torch.bfloat16) * 0.05)(C, 3 * C)), 'wo_s': _w((lambda *s: torch.randn(*s, dtype=torch.bfloat16) * 0.4)(C, C))}

def reference(x, wqkv_t, wo_t, wqkv_s, wo_s):
    B, T, N, C = x.shape
    scale = C ** (-0.5)
    xt = (lambda x, *d: x.permute(*d))(x, 0, 2, 1, 3).reshape(B * N, T, C)
    h = _layernorm(xt, axis=-1)
    qkv = h @ wqkv_t
    q, k, v = (qkv[..., :C].clone(), qkv[..., C:2 * C].clone(), qkv[..., 2 * C:].clone())
    a = _softmax(torch.einsum('btc,bsc->bts', q, k) * scale, axis=-1)
    xt = xt + torch.einsum('bts,bsc->btc', a, v) @ wo_t
    x1 = (lambda x, *d: x.permute(*d))(xt.reshape(B, N, T, C), 0, 2, 1, 3)
    xs = x1.reshape(B * T, N, C)
    h = _layernorm(xs, axis=-1)
    qkv = h @ wqkv_s
    q, k, v = (qkv[..., :C].clone(), qkv[..., C:2 * C].clone(), qkv[..., 2 * C:].clone())
    a = _softmax(torch.einsum('bnc,bmc->bnm', q, k) * scale, axis=-1)
    xs = xs + torch.einsum('bnm,bmc->bnc', a, v) @ wo_s
    return xs.reshape(B, T, N, C)
```

```python
class Asm:
    def __init__(self):
        self.lines = []
        self.nlabel = 0
    def __call__(self, s):
        for l in s.split('\n'):
            l = l.strip()
            if l:
                self.lines.append(l if l.endswith(':') else '    ' + l)
    def label(self, base='L'):
        self.nlabel += 1
        return f'{base}_{self.nlabel}'
    def text(self):
        return '\n'.join(self.lines) + '\n'

HEAD = '''.amdgcn_target "amdgcn-amd-amdhsa--gfx950"
.text
.p2align 12
'''
def kernel_text(name, body, vgpr, sgpr, accum):
    return f'''.globl {name}
.p2align 8
.type {name},@function
{name}:
{body}'''
def kernel_desc(name, vgpr, sgpr, accum, extra=''):
    return f'''.p2align 6
.amdhsa_kernel {name}
  .amdhsa_next_free_vgpr {vgpr}
  .amdhsa_next_free_sgpr {sgpr}
  .amdhsa_accum_offset {accum}
  .amdhsa_group_segment_fixed_size 0
  .amdhsa_kernarg_size 64
  .amdhsa_user_sgpr_count 2
  .amdhsa_user_sgpr_kernarg_segment_ptr 1
  .amdhsa_system_sgpr_workgroup_id_x 1
{extra}.end_amdhsa_kernel
'''
def module(kernels, launches, header=''):
    s = header
    for (n, g, b, lds) in launches:
        s += f'; @launch kernel={n} grid=({g},1,1) block=({b},1,1) lds={lds}\n'
    s += HEAD
    for k in kernels:
        s += kernel_text(*k[:5])
    s += '.section .rodata,"a"\n'
    for k in kernels:
        s += kernel_desc(k[0], k[2], k[3], k[4], k[5] if len(k) > 5 else '')
    return s
```

```python
import re

TRANS = ('v_exp_f32', 'v_log_f32', 'v_rcp_f32', 'v_rsq_f32', 'v_sqrt_f32', 'v_sin_f32', 'v_cos_f32', 'v_rcp_iflag_f32')


def regs_of(tok):
    tok = tok.strip()
    tok = tok.lstrip('-')
    if tok.startswith('abs(') or tok.startswith('neg('):
        tok = tok[4:-1]
    if tok.startswith('|'):
        tok = tok.strip('|')
    m = re.fullmatch(r'([vas])(\d+)', tok)
    if m:
        return [(m.group(1), int(m.group(2)))]
    m = re.fullmatch(r'([vas])\[(\d+):(\d+)\]', tok)
    if m:
        return [(m.group(1), r) for r in range(int(m.group(2)), int(m.group(3)) + 1)]
    if tok == 'vcc':
        return [('s', 'vcc_lo'), ('s', 'vcc_hi')]
    if tok in ('vcc_lo', 'vcc_hi', 'm0', 'exec_lo', 'exec_hi'):
        return [('s', tok)]
    if tok == 'exec':
        return [('s', 'exec_lo'), ('s', 'exec_hi')]
    return []


def split_ops(s):
    out, depth, cur = [], 0, ''
    for ch in s:
        if ch in '[(':
            depth += 1
        if ch in '])':
            depth -= 1
        if ch == ',' and depth == 0:
            out.append(cur.strip())
            cur = ''
        else:
            cur += ch
    if cur.strip():
        out.append(cur.strip())
    return out


class Ins:
    __slots__ = ('text', 'op', 'kind', 'rd', 'wr', 'tag', 'cond', 'mf', 'ws', 'dpp', 'ops', 'mods')

    def __init__(self, text, tag=None, cond=False):
        self.text = text
        self.tag = tag
        self.cond = cond
        self.rd, self.wr = [], []
        self.mf = None
        self.ws = 1
        self.dpp = False
        t = text.split(';')[0].strip()
        if t.endswith(':'):
            self.op, self.kind, self.ws = t, 'label', 0
            return
        if t.startswith('.') or t.startswith('@'):
            self.op, self.kind, self.ws = t, 'dir', 0
            return
        parts = t.split(None, 1)
        op = parts[0]
        rest = parts[1] if len(parts) > 1 else ''
        ops = split_ops(rest)
        mods = ''
        if ops:
            last = ops[-1].split(None, 1)
            if len(last) > 1 and not op.startswith('s_waitcnt'):
                ops[-1], mods = last[0], last[1]
        self.op, self.ops, self.mods = op, ops, mods
        base = re.sub(r'_(e32|e64|dpp|sdwa)$', '', op)
        R = lambda i: regs_of(ops[i]) if i < len(ops) else []
        allsrc = lambda i0: [r for i in range(i0, len(ops)) for r in regs_of(ops[i])]
        if op.startswith('v_mfma'):
            self.kind = 'mfma'
            self.wr = R(0)
            self.rd = R(1) + R(2) + R(3)
            passes = 8 if '32x32' in op else 4
            self.mf = dict(passes=passes, d=R(0), ab=R(1) + R(2), c=R(3), op=op)
        elif op.startswith('v_'):
            self.kind = 'valu'
            self.dpp = op.endswith('_dpp') or 'quad_perm' in mods or 'row_' in mods
            if base.startswith('v_permlane') and 'swap' in base:
                self.wr = R(0) + R(1)
                self.rd = R(0) + R(1)
            elif base in ('v_add_co_u32', 'v_sub_co_u32', 'v_addc_co_u32'):
                self.wr = R(0) + R(1)
                self.rd = allsrc(2)
            elif base == 'v_nop':
                pass
            else:
                self.wr = R(0)
                self.rd = allsrc(1)
                if base in ('v_fmac_f32', 'v_dot2c_f32_bf16', 'v_writelane_b32', 'v_fma_mixlo_f16', 'v_fma_mixhi_f16') or self.dpp or op.endswith('_sdwa'):
                    self.rd = self.rd + R(0)
                if base.startswith('v_cmpx'):
                    raise ValueError('avoid v_cmpx')
        elif op.startswith('ds_'):
            self.kind = 'ds'
            if op.startswith('ds_read') or op.startswith('ds_bpermute') or op.startswith('ds_permute') or op.startswith('ds_swizzle'):
                self.wr = R(0)
                self.rd = allsrc(1)
            else:
                self.rd = allsrc(0)
        elif op.startswith('buffer_') or op.startswith('global_'):
            self.kind = 'vmem'
            islds = re.search(r'\blds\b', mods) is not None
            if op in ('buffer_wbl2', 'buffer_inv'):
                pass
            elif '_load' in op and not islds:
                self.wr = R(0)
                self.rd = allsrc(1)
                if 'd16' in op:
                    self.rd = self.rd + R(0)
            elif islds:
                self.rd = allsrc(0) + [('s', 'm0')]
                self.kind = 'dma'
            elif '_atomic' in op and 'sc0' in mods:
                self.wr = R(0)
                self.rd = allsrc(0)
            else:
                self.rd = allsrc(0)
        elif op.startswith('s_load') or op in ('s_memtime', 's_memrealtime'):
            self.kind = 'smem'
            self.wr = R(0)
            self.rd = allsrc(1)
        elif op == 's_nop':
            self.kind = 'nop'
            self.ws = int(ops[0], 0) + 1
        elif op == 's_waitcnt':
            self.kind = 'wait'
        elif op.startswith('s_cbranch') or op == 's_branch' or op in ('s_endpgm', 's_setpc_b64'):
            self.kind = 'branch'
            if 'vcc' in op:
                self.rd = regs_of('vcc')
        elif op in ('s_barrier', 's_sleep', 's_setprio'):
            self.kind = 'smisc'
        elif op.startswith('s_cmp') or op.startswith('s_bitcmp'):
            self.kind = 'salu'
            self.rd = allsrc(0)
        elif op.startswith('s_'):
            self.kind = 'salu'
            self.wr = R(0)
            self.rd = allsrc(1)
            if 'saveexec' in op:
                self.wr = self.wr + regs_of('exec')
            if op in ('s_addk_i32', 's_mulk_i32'):
                self.rd = self.rd + R(0)
        else:
            raise ValueError('unknown instruction ' + text)

    def base(self):
        return re.sub(r'_(e32|e64|dpp|sdwa)$', '', self.op)


class Prog:
    def __init__(self):
        self.ins = []
        self.nl = 0
        self.stats = {}

    def __call__(self, s, tag=None, cond=False):
        for l in s.split('\n'):
            l = l.strip()
            if l and not l.startswith(';'):
                self.ins.append(Ins(l, tag, cond))

    def label(self, base):
        self.nl += 1
        return f'{base}_{self.nl}'

    def wait_tag(self, tag):
        self.ins.append(Ins('@wait ' + str(tag)))

    def fresh(self):
        self.ins.append(Ins('@fresh'))

    def finalize(self):
        out = []
        vq, lq = [], []
        smem = []
        hist = []
        nnop = nwait = 0

        def emit(i):
            out.append(i)
            hist.append(i)
            if len(hist) > 64:
                del hist[0]

        def need(q, pred):
            last = -1
            for k, o in enumerate(q):
                if pred(o):
                    last = k
            if last < 0:
                return None
            return sum(1 for o in q[last + 1:] if not o.cond), last

        for i in self.ins:
            if i.kind == 'dir' and i.op == '@fresh':
                vq, lq, smem, hist = [], [], [], []
                continue
            vm = lg = None
            if i.kind == 'dir' and i.op.startswith('@wait'):
                tag = i.op.split(None, 1)[1]
                vm = need(vq, lambda o: str(o.tag) == tag)
                lg = need(lq, lambda o: str(o.tag) == tag)
            elif i.kind not in ('label', 'dir') or i.op.startswith('@touch'):
                touch = set(i.rd) | set(i.wr)
                if i.op.startswith('@touch'):
                    touch = set(regs_of(i.op.split(None, 1)[1]))
                vm = need(vq, lambda o: touch & set(o.wr))
                lg = need(lq, lambda o: touch & set(o.wr))
                if any(touch & set(o.wr) for o in smem):
                    lg = (0, len(lq) - 1)
            if lg is not None and smem:
                lg = (0, len(lq) - 1)
            parts = []
            if vm is not None:
                n = min(vm[0], 63)
                parts.append(f'vmcnt({n})')
                del vq[:vm[1] + 1]
            if lg is not None:
                n = lg[0]
                if n > 15:
                    n = 15
                parts.append(f'lgkmcnt({n})')
                del lq[:lg[1] + 1]
                if n == 0:
                    lq.clear()
                    smem = []
            if parts:
                emit(Ins('s_waitcnt ' + ' '.join(parts)))
                nwait += 1
            if i.kind == 'dir' and i.op.startswith('@'):
                continue
            if i.kind == 'wait':
                m = re.search(r'vmcnt\((\d+)\)', i.text)
                if m:
                    n = int(m.group(1))
                    keep, cnt = [], 0
                    for o in reversed(vq):
                        if cnt < n:
                            keep.append(o)
                            if not o.cond:
                                cnt += 1
                    vq = list(reversed(keep))
                m = re.search(r'lgkmcnt\((\d+)\)', i.text)
                if m:
                    n = int(m.group(1))
                    if n == 0:
                        lq, smem = [], []
                    elif not smem:
                        keep, cnt = [], 0
                        for o in reversed(lq):
                            if cnt < n:
                                keep.append(o)
                                if not o.cond:
                                    cnt += 1
                        lq = list(reversed(keep))
            req = self.hazard(i, hist)
            while req > 0:
                k = min(req, 16)
                emit(Ins(f's_nop {k - 1}'))
                nnop += k
                req -= k
            emit(i)
            if i.kind in ('vmem', 'dma'):
                vq.append(i)
            elif i.kind == 'ds':
                lq.append(i)
            elif i.kind == 'smem':
                smem.append(i)
        self.stats = dict(n=len(out), nop_states=nnop, waits=nwait)
        return out

    @staticmethod
    def hazard(i, hist):
        if i.kind in ('label', 'dir', 'nop', 'wait'):
            return 0
        req = 0
        dist = 0
        rd, wr = set(i.rd), set(i.wr)
        ib = i.base()
        for p in reversed(hist):
            if dist >= 20:
                break
            need = 0
            pw = set(p.wr)
            if p.kind == 'valu':
                pb = p.base()
                pv = {r for r in pw if r[0] in 'va'}
                ps = {r for r in pw if r[0] == 's'}
                if i.kind == 'mfma' and pv & rd:
                    need = max(need, 2)
                if i.kind == 'valu':
                    if i.dpp and pv & rd:
                        need = max(need, 2)
                    if ib.startswith('v_permlane') and pv & rd:
                        need = max(need, 2)
                    if ib in ('v_readlane_b32', 'v_readfirstlane_b32') and pv & rd:
                        need = max(need, 1)
                    if pb in TRANS and ib not in TRANS and pv & rd:
                        need = max(need, 1)
                    if ps & rd:
                        need = max(need, 4 if ib in ('v_readlane_b32', 'v_writelane_b32') else 2)
                    if (p.op.endswith('_sdwa') or 'op_sel' in p.mods or pb.startswith('v_fma_mix')) and pv & (rd | wr):
                        need = max(need, 1)
                    if pb.startswith('v_dot') and pv & (rd | wr):
                        if not (pb == ib and not (pv & set(regs_of(i.ops[1]) + regs_of(i.ops[2])))):
                            need = max(need, 3)
                if pb.startswith('v_dot') and i.kind in ('mfma', 'ds', 'vmem', 'dma') and pv & rd:
                    need = max(need, 3)
                if i.kind in ('vmem', 'dma') and ps & rd:
                    need = max(need, 5)
                if i.kind in ('ds', 'vmem', 'dma') and pb in TRANS and pv & rd:
                    need = max(need, 1)
            elif p.kind == 'mfma':
                d = set(p.mf['d'])
                four = p.mf['passes'] == 4
                if i.kind == 'mfma':
                    if d & set(i.mf['ab']):
                        need = max(need, 8 if four else 12)
                    if d & set(i.mf['c']):
                        if not (i.mf['c'] == p.mf['d'] and i.mf['op'] == p.mf['op']):
                            need = max(need, 6 if four else 10)
                    elif d & wr:
                        need = max(need, 6 if four else 10)
                elif i.kind in ('valu', 'ds', 'vmem', 'dma'):
                    if d & (rd | wr):
                        need = max(need, 8 if four else 12)
                    if set(p.mf['c']) & wr:
                        need = max(need, 3 if four else 7)
            elif p.kind == 'salu':
                if ('s', 'm0') in pw and i.kind == 'dma':
                    need = max(need, 1)
            elif p.kind == 'vmem':
                if 'store' in p.op and ('x3' in p.op or 'x4' in p.op):
                    data = set(regs_of(p.ops[0] if p.op.startswith('buffer') else p.ops[1]))
                    if data & wr:
                        need = max(need, 2)
            req = max(req, need - dist)
            dist += p.ws
        return req

    def text(self):
        out = self.finalize()
        s = []
        for i in out:
            s.append(i.text if i.kind == 'label' else '    ' + i.text)
        return '\n'.join(s) + '\n'


def interleave(mfmas, fillers, start=0):
    by = {}
    for g, item in fillers:
        by.setdefault(g, []).append(item)
    out = []
    for item in by.get(-1, []):
        out.append(item)
    for k, m in enumerate(mfmas):
        out.append(m)
        for item in by.get(k, []):
            out.append(item)
    return out
```

```python
import sys, struct
from emit import *
from asm import module

T, N, C = 7, 729, 192
TILE = 12288
FRAME = 23 * TILE
NMAIN, NFOLD = 184, 18
XBYTES = 1959552
WS_H2 = 0
WS_ST = 7 * FRAME
WS_AF = WS_ST + NMAIN * 256
WS_BF = WS_AF + 73728
WS_FL = WS_BF + 73728
WS_END = WS_FL + NFOLD * 4096
WS_STAMP = 4 << 20
OOB = 0x7fff0000
L_XB, L_HB, L_SB, L_STP = 98304, 110592, 122880, 131072
L_QB, L_MS = 147456, 159744
LDS_BYTES = L_MS + 2048
SCALE_LOG2E = (C ** -0.5) * 1.4426950408889634
SPIN_MAX = 1 << 18


def fbits(x):
    return '0x%08x' % struct.unpack('<I', struct.pack('<f', x))[0]


def vr(b, n=1):
    return f'v[{b}:{b+n-1}]' if n > 1 else f'v{b}'


def ar(b, n=1):
    return f'a[{b}:{b+n-1}]' if n > 1 else f'a{b}'


sX, sW, sWS, sWO, sOUT, sDBG, sCODE = 's[4:7]', 's[8:11]', 's[12:15]', 's[16:19]', 's[20:23]', 's[24:27]', 's[28:31]'
LANE, II, GG = 1, 2, 3
aXG = 192; aQK = 193; aV = 196; aO = 199; tQK = 202; tV = 214; wH = 220; wX = 221; rF = 222; rX = 226; wA = 232
wS = 238; rS = 239; wST = 240; rST = 241; gH = 242; gST = 243; L16 = 244; vFC = 245; vFCA = 246
QA, KA, VA, AT = 64, 88, 112, 136
QBF, KBF = 160, 176
HF, WF = 0, 48
AFR, BFR = 104, 176


class Opt:
    fused = True
    stamps = False
    st_flav = 'sc1'
    ld_flav = 'sc1'
    out_flav = ''
    D = 4


def mix(a, b):
    if not b:
        return list(a)
    out = []
    n, m = len(a), len(b)
    k = 0
    for x in range(n):
        out.append(a[x])
        while k < m and (k + 1) * n <= (x + 1) * (m + 1) - 0:
            out.append(b[k]); k += 1
    out += b[k:]
    return out


def run(p, items):
    for it in items:
        if callable(it):
            it(p)
        elif isinstance(it, tuple):
            p(it[0], tag=it[1])
        else:
            p(it)


class Stamps:
    def __init__(self, on):
        self.on, self.n, self.names = on, 0, []

    def __call__(self, p, name):
        if not self.on or self.n >= 10:
            return
        r = 80 + 2 * self.n
        p(f's_memrealtime s[{r}:{r+1}]')
        self.names.append(name)
        self.n += 1

    def flush(self, p, base):
        if not self.on:
            return
        p(f'''s_waitcnt lgkmcnt(0)
        s_lshl_b32 s32, s2, 2
        s_add_u32 s32, s32, s3
        s_lshl_b32 s32, s32, 6
        s_add_u32 s32, s32, {base}
        v_mov_b32 v20, s32''')
        for k in range(self.n):
            p(f'v_mov_b32 v21, s{80+2*k}')
            p(f'buffer_store_dword v21, v20, {sWS}, 0 offen offset:{4*k}')
        p('s_waitcnt vmcnt(0)')


def setup(p, o, nwg, code_bytes, endl):
    p(f'''
    s_load_dwordx16 s[64:79], s[0:1], 0
    s_cmp_ge_u32 s2, {nwg}
    s_cbranch_scc1 {endl}
    s_getpc_b64 s[28:29]
    {endl}_pc:
    s_mov_b32 s30, {code_bytes}-{endl}_pc
    s_mov_b32 s31, 0x00020000
    v_lshlrev_b32 v4, 7, v0
    buffer_load_dword v254, v4, {sCODE}, 0 offen
    v_lshrrev_b32 v6, 6, v0
    v_and_b32 v{LANE}, 63, v0
    v_readfirstlane_b32 s3, v6
    v_and_b32 v{II}, 15, v0
    v_bfe_u32 v{GG}, v0, 4, 2
    v_lshlrev_b32 v{L16}, 4, v{LANE}
    s_mov_b32 s6, {XBYTES}
    s_mov_b32 s7, 0x00020000
    s_mov_b32 s10, 221184
    s_mov_b32 s11, 0x00020000
    s_mov_b32 s14, {(WS_STAMP + (1 << 20)) if o.stamps else WS_END}
    s_mov_b32 s15, 0x00020000
    s_mov_b32 s18, 73728
    s_mov_b32 s19, 0x00020000
    s_mov_b32 s22, {XBYTES}
    s_mov_b32 s23, 0x00020000
    s_mov_b32 s26, 256
    s_mov_b32 s27, 0x00020000
    ''')


def srds(p, spatial_weights):
    w, wo = (70, 72) if spatial_weights else (66, 68)
    p(f'''
    s_mov_b32 s4, s64
    s_mov_b32 s5, s65
    s_mov_b32 s8, s{w}
    s_mov_b32 s9, s{w+1}
    s_mov_b32 s16, s{wo}
    s_mov_b32 s17, s{wo+1}
    s_mov_b32 s12, s78
    s_mov_b32 s13, s79
    s_mov_b32 s20, s74
    s_mov_b32 s21, s75
    s_mov_b32 s24, s76
    s_mov_b32 s25, s77
    ''')


def phi_code(dst, row, tmp):
    return f'''v_lshrrev_b32 v{tmp}, 3, v{row}
    v_xor_b32 v{tmp}, v{tmp}, v{row}
    v_and_b32 v{tmp}, 14, v{tmp}
    v_lshlrev_b32 v{dst}, 3, v{tmp}'''


def t_addresses_first(p):
    p(f'''
    v_lshrrev_b32 v6, 3, v{LANE}
    v_and_b32 v7, 7, v{LANE}
    s_lshl_b32 s32, s2, 2
    s_add_u32 s32, s32, s3
    s_mul_i32 s33, s32, 384
    s_mov_b32 s34, 279936
    v_mul_lo_u32 v8, v6, s34
    v_lshl_add_u32 v8, v7, 4, v8
    v_add_u32 v8, s33, v8
    s_cmp_lt_u32 s32, {N}
    s_cselect_b32 s34, 7, 0
    v_cmp_gt_u32 vcc, s34, v6
    v_mov_b32 v9, {OOB}
    v_cndmask_b32 v{aXG}, v9, v8, vcc
    s_and_b32 s35, s3, 1
    s_lshl_b32 s36, s35, 2
    s_lshl_b32 s37, s35, 1
    s_mul_i32 s38, s3, {8*1152}
    ''')
    for n in range(3):
        p(f'''
        v_add_u32 v8, {64*n}, v{LANE}
        v_mul_u32_u24 v9, 683, v8
        v_lshrrev_b32 v9, 15, v9
        v_mul_u32_u24 v10, 48, v9
        v_sub_u32 v10, v8, v10
        v_add_u32 v11, s36, v9
        v_lshlrev_b32 v11, 1, v11
        v_xor_b32 v10, v10, v11
        v_mul_u32_u24 v9, 1152, v9
        v_lshl_add_u32 v9, v10, 4, v9
        v_add_u32 v9, s38, v9
        v_subrev_u32 v{aQK+n}, {1024*n}, v9
        ''')
    p(f'''
    s_lshr_b32 s32, s2, 3
    s_lshl_b32 s32, s32, 2
    s_add_u32 s32, s32, s3
    s_lshl_b32 s33, s32, 13
    v_lshlrev_b32 v16, 7, v{LANE}
    v_add_u32 v16, s33, v16
    v_subrev_u32 v17, 221184, v16
    v_min_u32 v17, {OOB}, v17
    ''')


def t_addresses_rest(p):
    p(f's_mul_i32 s39, s3, 3072')
    for n in range(3):
        p(f'''
        v_add_u32 v20, {64*n}, v{LANE}
        v_mul_u32_u24 v21, 683, v20
        v_lshrrev_b32 v21, 14, v21
        v_bfe_u32 v22, v21, 1, 1
        v_add_u32 v22, s37, v22
        v_lshlrev_b32 v22, 1, v22
        v_xor_b32 v23, v{LANE}, v22
        v_lshl_add_u32 v{aO+n}, v23, 4, s39
        v_mul_u32_u24 v21, 768, v21
        v_lshl_add_u32 v21, v23, 4, v21
        v_add_u32 v21, s38, v21
        v_add_u32 v{aV+n}, 768, v21
        ''')
    p(f'''
    v_lshrrev_b32 v20, 2, v{II}
    v_lshl_add_u32 v21, v{GG}, 3, v20
    v_and_b32 v22, 1, v{GG}
    v_lshl_add_u32 v23, v22, 2, v20
    v_and_b32 v24, 3, v{II}
    v_lshlrev_b32 v24, 3, v24
    v_mad_u32_u24 v25, v21, 48, 0
    v_lshl_add_u32 v25, v25, 4, v24
    v_lshlrev_b32 v23, 5, v23
    s_mul_i32 s32, s3, 96
    ''')
    for mat in range(2):
        for mt in range(3):
            k = 3 * mat + mt
            p(f'''s_add_u32 s33, s32, {32*(12*mat+mt)}
            v_xad_u32 v{tQK+k}, s33, v23, v25
            v_add_u32 v{tQK+6+k}, 49152, v{tQK+k}''')
    p(f'''
    v_lshrrev_b32 v20, 3, v{II}
    v_lshl_add_u32 v23, v22, 1, v20
    v_lshlrev_b32 v23, 5, v23
    v_mad_u32_u24 v25, v21, 24, 0
    v_lshl_add_u32 v25, v25, 4, v24
    ''')
    for mt in range(3):
        p(f'''s_add_u32 s33, s32, {32*mt}
        v_xad_u32 v{tV+mt}, s33, v23, v25
        v_add_u32 v{tV+3+mt}, 49152, v{tV+mt}''')
    p(f'''
    v_lshrrev_b32 v20, 3, v{LANE}
    v_and_b32 v21, 7, v{LANE}
    v_lshlrev_b32 v21, 4, v21
    s_lshl_b32 s33, s3, 3
    v_add_u32 v22, s33, v20
    {phi_code(23, 22, 24)}
    v_mul_u32_u24 v22, 384, v22
    v_add_u32 v22, {L_HB}, v22
    v_xad_u32 v{wH}, v21, v23, v22
    v_lshl_add_u32 v22, v20, 2, s3
    {phi_code(23, 22, 24)}
    v_mul_u32_u24 v22, 384, v22
    v_add_u32 v22, {L_XB}, v22
    v_xad_u32 v{wX}, v21, v23, v22
    ''')
    p(f'''
    {phi_code(23, II, 24)}
    v_mul_u32_u24 v22, 384, v{II}
    v_lshlrev_b32 v21, 4, v{GG}
    v_add_u32 v25, {L_HB}, v22
    v_xad_u32 v{rF}, v21, v23, v25
    v_xor_b32 v{rF+1}, 64, v{rF}
    v_xor_b32 v24, 16, v{rF}
    v_add_u32 v{rF+2}, 6144, v24
    v_xor_b32 v{rF+3}, 64, v{rF+2}
    v_lshrrev_b32 v20, 1, v{GG}
    v_lshlrev_b32 v20, 4, v20
    v_xor_b32 v23, v23, v20
    v_and_b32 v21, 1, v{GG}
    v_lshl_add_u32 v22, v21, 3, v22
    v_add_u32 v22, {L_XB}, v22
    ''')
    for mt in range(3):
        p(f'''s_add_u32 s33, s32, {32*mt}
        v_xad_u32 v{rX+2*mt}, s33, v23, v22
        v_xor_b32 v24, 16, v{rX+2*mt}
        v_add_u32 v{rX+2*mt+1}, 6144, v24''')
    for nt in range(2):
        p(f'''
        v_and_b32 v22, 7, v{II}
        v_lshlrev_b32 v22, 2, v22
        v_lshrrev_b32 v24, 3, v{II}
        v_add3_u32 v22, v22, v24, {2*nt}
        {phi_code(23, 22, 24)}
        v_xor_b32 v23, v23, v20
        v_mul_u32_u24 v22, 384, v22
        v_lshl_add_u32 v22, v21, 3, v22
        v_add_u32 v22, {L_HB}, v22
        ''')
        for mt in range(3):
            p(f'''s_add_u32 s33, s32, {32*mt}
            v_xad_u32 v{wA+2*mt+nt}, s33, v23, v22''')
    p(f'''
    s_lshl_b32 s33, s3, 11
    s_add_u32 s33, s33, {L_SB}
    v_add_u32 v{wS}, s33, v{L16}
    v_add_u32 v{rS}, {L_SB}, v{L16}
    s_lshl_b32 s33, s3, 2
    s_add_u32 s33, s33, {L_STP}
    v_add_u32 v{wST}, s33, v{L16}
    v_lshlrev_b32 v22, 4, v{II}
    v_add_u32 v{rST}, {L_STP}, v22
    ''')
    p(f'''
    v_lshrrev_b32 v22, 2, v{II}
    v_lshl_add_u32 v22, v21, 2, v22
    s_mov_b32 s33, {FRAME}
    v_mul_lo_u32 v23, v22, s33
    s_bfe_u32 s33, s2, 0x10001
    v_lshrrev_b32 v24, 1, v{GG}
    v_xor_b32 v24, s33, v24
    v_lshl_add_u32 v23, v24, 6, v23
    v_and_b32 v24, 3, v{II}
    v_lshl_add_u32 v23, v24, 4, v23
    v_cmp_gt_u32 vcc, 7, v22
    v_mov_b32 v24, {OOB}
    v_cndmask_b32 v{gH}, v24, v23, vcc
    s_lshl_b32 s33, s2, 8
    s_add_u32 s33, s33, {WS_ST}
    v_lshl_add_u32 v23, v{LANE}, 3, s33
    v_cmp_gt_u32 vcc, 32, v0
    v_cndmask_b32 v{gST}, v24, v23, vcc
    v_lshrrev_b32 v22, 3, v{II}
    v_lshrrev_b32 v23, 1, v{GG}
    v_cmp_eq_u32 s[58:59], v22, v23
    v_cmp_eq_u32 s[60:61], 0, v21
    v_lshlrev_b32 v22, 2, v{LANE}
    v_cmp_gt_u32 vcc, {NFOLD}, v{LANE}
    v_cndmask_b32 v{vFCA}, v24, v22, vcc
    ''')
    for nt in range(2):
        for b in (QBF, KBF):
            p(f'v_mov_b32 v{b+8*nt+6}, 0\nv_mov_b32 v{b+8*nt+7}, 0')


def dma_item(n):
    slot = (n % 4) * 24576
    out = []
    for grp in range(2):
        if n < 6:
            m0 = f's_add_u32 m0, s62, {slot + grp*3072}'
            so = f's_mov_b32 s53, {n*32*1152 + grp*4*1152}'
            voff, srd = aQK, sW
        elif n < 9:
            m0 = f's_add_u32 m0, s39, {slot + grp*12288}'
            so = f's_mov_b32 s53, {(2*(n-6)+grp)*32*1152}'
            voff, srd = aV, sW
        else:
            m0 = f's_add_u32 m0, s39, {slot + grp*12288}'
            so = f's_mov_b32 s53, {(2*(n-9)+grp)*12288}'
            voff, srd = aO, sWO
        for k in range(3):
            ld = (f'buffer_load_dwordx4 v{voff+k}, {srd}, s53 offen offset:{1024*k} lds', f'it{n}')
            if k == 0:
                out.append(lambda p, m0=m0, so=so, ld=ld: (p(m0), p(so), p(ld[0], tag=ld[1])))
            else:
                out.append(ld)
    return out


def stage_qk(s):
    slot = s % 4
    base, off = tQK + 6 * (slot // 2), (slot % 2) * 24576
    rd, mf = [], []
    for k in range(6):
        mat, mt = divmod(k, 3)
        f = WF + 4 * k
        for u in range(2):
            rd.append(f'ds_read_b64_tr_b16 {ar(f+2*u,2)}, v{base+k} offset:{off + 3072*u}')
        for nt in range(2):
            acc = (QA, KA)[mat] + 8 * mt + 4 * nt
            c = vr(acc, 4) if s else '0'
            mf.append(f'v_mfma_f32_16x16x32_bf16 {vr(acc,4)}, {ar(f,4)}, {ar(HF+24*nt+4*s,4)}, {c}')
    return rd, mf


def stage_vo(n):
    slot = n % 4
    base, off = tV + 3 * (slot // 2), (slot % 2) * 24576
    rd, mf = [], []
    for half in range(2):
        ks = 2 * ((n - 6) % 3) + half
        for mt in range(3):
            f = WF + 4 * (3 * half + mt)
            for u in range(2):
                rd.append(f'ds_read_b64_tr_b16 {ar(f+2*u,2)}, v{base+mt} offset:{off + 12288*half + 1536*u}')
            for nt in range(2):
                h = ar(HF + 24 * nt + 4 * ks, 4)
                if n < 9:
                    acc = VA + 8 * mt + 4 * nt
                    c = vr(acc, 4) if ks else '0'
                    mf.append(f'v_mfma_f32_16x16x32_bf16 {vr(acc,4)}, {h}, {ar(f,4)}, {c}')
                else:
                    acc = QA + 8 * mt + 4 * nt
                    mf.append(f'v_mfma_f32_16x16x32_bf16 {vr(acc,4)}, {ar(f,4)}, {h}, {vr(acc,4)}')
    return rd, mf


def frag16_reads(base):
    return [f'ds_read_b128 {ar(HF+24*nt+4*ks,4)}, v{base+2*nt+(ks&1)} offset:{128*(ks>>1)}' for ks in range(6) for nt in range(2)]


def barrier(p, *tags):
    for t in tags:
        p.wait_tag(t)
    p('s_waitcnt lgkmcnt(0)\ns_barrier')


def ln1_code():
    X = 4
    c = ['v_mov_b32 v20, 0x3f803f80']
    for k in range(12):
        c.append(f'v_dot2_f32_bf16 v16, v{X+k}, v20, {"v16" if k else "0"}')
        c.append(f'v_dot2_f32_bf16 v17, v{X+k}, v{X+k}, {"v17" if k else "0"}')
    for b in range(3):
        c.append(f'ds_write_b128 v{wX}, {vr(X+4*b,4)} offset:{128*b}')
    for d in ('quad_perm:[1,0,3,2]', 'quad_perm:[2,3,0,1]', 'row_half_mirror'):
        c.append(f'v_add_f32_dpp v16, v16, v16 {d} row_mask:0xf bank_mask:0xf')
        c.append(f'v_add_f32_dpp v17, v17, v17 {d} row_mask:0xf bank_mask:0xf')
    c += [f'v_mul_f32 v16, {fbits(1/192)}, v16',
          f'v_mul_f32 v17, {fbits(1/192)}, v17',
          'v_fma_f32 v17, -v16, v16, v17',
          'v_max_f32 v17, 0, v17',
          f'v_add_f32 v17, {fbits(1e-5)}, v17',
          'v_rsq_f32 v17, v17']
    for k in range(12):
        c.append(f'v_lshlrev_b32 v{24+2*k}, 16, v{X+k}')
        c.append(f'v_and_b32 v{25+2*k}, 0xffff0000, v{X+k}')
        if k == 0:
            c.append('v_mul_f32 v16, v16, v17')
    for k in range(12):
        c.append(f'v_fma_f32 v{24+2*k}, v{24+2*k}, v17, -v16')
        c.append(f'v_fma_f32 v{25+2*k}, v{25+2*k}, v17, -v16')
        c.append(f'v_cvt_pk_bf16_f32 v{48+k}, v{24+2*k}, v{25+2*k}')
        if k % 4 == 3:
            c.append(f'ds_write_b128 v{wH}, {vr(48+k-3,4)} offset:{128*(k//4)}')
    return c


def s_partial_code():
    c = []
    for nt in range(2):
        for (acc, pk) in ((KA, KBF), (QA, QBF)):
            for mt in range(3):
                a = acc + 8 * mt + 4 * nt
                c.append(f'v_cvt_pk_bf16_f32 v{pk+8*nt+2*mt}, v{a}, v{a+1}')
                c.append(f'v_cvt_pk_bf16_f32 v{pk+8*nt+2*mt+1}, v{a+2}, v{a+3}')
    for nt in range(2):
        c.append(f'v_mfma_f32_16x16x32_bf16 {vr(24+4*nt,4)}, {vr(KBF+8*nt,4)}, {vr(QBF+8*nt,4)}, 0')
    for nt in range(2):
        c.append(f'v_mfma_f32_16x16x32_bf16 {vr(24+4*nt,4)}, {vr(KBF+8*nt+4,4)}, {vr(QBF+8*nt+4,4)}, {vr(24+4*nt,4)}')
    for nt in range(2):
        c.append(f'ds_write_b128 v{wS}, {vr(24+4*nt,4)} offset:{1024*nt}')
    return c


PT = 16


def t_softmax_code():
    rd = [f'ds_read_b128 {vr(24+16*nt+4*w,4)}, v{rS} offset:{2048*w+1024*nt}' for nt in range(2) for w in range(4)]
    c = []
    for nt in range(2):
        b = 24 + 16 * nt
        for j in range(4):
            c.append(f'v_add_f32 v{b+j}, v{b+j}, v{b+4+j}')
            c.append(f'v_add_f32 v{b+8+j}, v{b+8+j}, v{b+12+j}')
        for j in range(4):
            c.append(f'v_add_f32 v{b+j}, v{b+j}, v{b+8+j}')
    c.append('v_mov_b32 v56, 0xff800000')
    c.append(f's_mov_b32 s32, {fbits(SCALE_LOG2E)}')
    seq = [[], []]
    for nt in range(2):
        b = 24 + 16 * nt
        m, t, l = b + 4, b + 5, b + 6
        seq[nt] = [
            f'v_cndmask_b32 v{b+3}, v56, v{b+3}, s[60:61]',
            f'v_max3_f32 v{m}, v{b}, v{b+1}, v{b+2}',
            f'v_max_f32 v{m}, v{m}, v{b+3}',
            f'v_mov_b32 v{t}, v{m}',
            f'v_permlane16_swap_b32 v{t}, v{m}',
            f'v_max_f32 v{m}, v{m}, v{t}',
            f'v_mul_f32 v{m}, s32, v{m}'] + \
            [f'v_fma_f32 v{b+j}, v{b+j}, s32, -v{m}' for j in range(4)] + \
            [f'v_exp_f32 v{b+j}, v{b+j}' for j in range(4)] + [
            f'v_add_f32 v{l}, v{b}, v{b+1}',
            f'v_add_f32 v{t}, v{b+2}, v{b+3}',
            f'v_add_f32 v{l}, v{l}, v{t}',
            f'v_mov_b32 v{t}, v{l}',
            f'v_permlane16_swap_b32 v{t}, v{l}',
            f'v_add_f32 v{l}, v{l}, v{t}',
            f'v_rcp_f32 v{l}, v{l}',
            f'v_cndmask_b32 v{l}, 0, v{l}, s[58:59]'] + \
            [f'v_mul_f32 v{b+j}, v{b+j}, v{l}' for j in range(4)] + [
            f'v_cvt_pk_bf16_f32 v{PT+2*nt}, v{b}, v{b+1}',
            f'v_cvt_pk_bf16_f32 v{PT+2*nt+1}, v{b+2}, v{b+3}']
    for x, y in zip(*seq):
        c += [x, y]
    return rd, c


def pv_code():
    c = []
    for mt in range(3):
        for nt in range(2):
            a = VA + 8 * mt + 4 * nt
            d = QBF + 4 * mt + 2 * nt
            c.append(f'v_cvt_pk_bf16_f32 v{d}, v{a}, v{a+1}')
            c.append(f'v_cvt_pk_bf16_f32 v{d+1}, v{a+2}, v{a+3}')
    for mt in range(3):
        for nt in range(2):
            c.append(f'v_mfma_f32_16x16x16_bf16 {vr(AT+8*mt+4*nt,4)}, {vr(QBF+4*mt+2*nt,2)}, {vr(PT+2*nt,2)}, 0')
    for mt in range(3):
        for nt in range(2):
            a = AT + 8 * mt + 4 * nt
            d = KBF + 4 * mt + 2 * nt
            c.append(f'v_cvt_pk_bf16_f32 v{d}, v{a}, v{a+1}')
            c.append(f'v_cvt_pk_bf16_f32 v{d+1}, v{a+2}, v{a+3}')
            c.append(f'ds_write_b64 v{wA+2*mt+nt}, {vr(d,2)}')
    return c


def resid_code():
    rd = [f'ds_read_b64 {vr(4+4*mt+2*nt,2)}, v{rX+2*mt+nt}' for mt in range(3) for nt in range(2)]
    c = []
    for mt in range(3):
        for nt in range(2):
            a, s = QA + 8 * mt + 4 * nt, 4 + 4 * mt + 2 * nt
            c += [f'v_lshlrev_b32 v{a}, 16, v{s}', f'v_and_b32 v{a+1}, 0xffff0000, v{s}',
                  f'v_lshlrev_b32 v{a+2}, 16, v{s+1}', f'v_and_b32 v{a+3}, 0xffff0000, v{s+1}']
    return rd, c


def ln2_a():
    c = []
    for k in range(12):
        for nt in range(2):
            a = QA + 8 * (k // 4) + 4 * nt + k % 4
            if k == 0:
                c.append(f'v_mul_f32 v{22+nt}, v{a}, v{a}')
            elif k == 1:
                c.append(f'v_add_f32 v{20+nt}, v{a-1}, v{a}')
                c.append(f'v_fmac_f32 v{22+nt}, v{a}, v{a}')
            else:
                c.append(f'v_add_f32 v{20+nt}, v{20+nt}, v{a}')
                c.append(f'v_fmac_f32 v{22+nt}, v{a}, v{a}')
    c += ['v_permlane16_swap_b32 v20, v21', 'v_permlane16_swap_b32 v22, v23',
          'v_add_f32 v20, v20, v21', 'v_add_f32 v22, v22, v23',
          'v_permlane32_swap_b32 v20, v22', 'v_add_f32 v20, v20, v22',
          f'ds_write_b32 v{wST}, v20']
    return c


def ln2_b(o):
    c = [f'ds_read_b128 {vr(24+4*k,4)}, v{rST} offset:{256*k}' for k in range(4)]
    for k in range(4):
        b = 24 + 4 * k
        c += [f'v_add_f32 v{b}, v{b}, v{b+1}', f'v_add_f32 v{b+2}, v{b+2}, v{b+3}']
    for k in range(4):
        b = 24 + 4 * k
        c.append(f'v_add_f32 v{b}, v{b}, v{b+2}')
    seq = []
    for nt in range(2):
        m, q = 24 + 4 * nt, 32 + 4 * nt
        seq.append([f'v_mul_f32 v{m}, {fbits(1/192)}, v{m}',
                    f'v_mul_f32 v{q}, {fbits(1/192)}, v{q}',
                    f'v_fma_f32 v{q}, -v{m}, v{m}, v{q}',
                    f'v_max_f32 v{q}, 0, v{q}',
                    f'v_add_f32 v{q}, {fbits(1e-5)}, v{q}',
                    f'v_rsq_f32 v{q+1}, v{q}',
                    f'v_mul_f32 v{q+2}, v{m}, v{q+1}',
                    f'v_mul_f32 v{m+1}, v{q}, v{q+1}'])
    for x, y in zip(*seq):
        c += [x, y]
    c += ['s_lshr_b32 s32, s2, 3', f's_mul_i32 s32, s32, {TILE}', 's_add_u32 s32, s32, s39',
          's_and_b32 s33, s2, 7', 's_and_b32 s34, s3, 1', 's_xor_b32 s33, s33, s34',
          's_lshl_b32 s34, s33, 7', 's_xor_b32 s33, s34, 128',
          's_add_u32 s34, s34, s32', 's_add_u32 s33, s33, s32']
    for mt in range(3):
        d = 40 + 4 * mt
        for nt in range(2):
            a, q = QA + 8 * mt + 4 * nt, 32 + 4 * nt
            c += [f'v_fma_f32 v{a+j}, v{a+j}, v{q+1}, -v{q+2}' for j in range(4)]
            c += [f'v_cvt_pk_bf16_f32 v{d+2*nt}, v{a}, v{a+1}', f'v_cvt_pk_bf16_f32 v{d+2*nt+1}, v{a+2}, v{a+3}']
        if mt == 0:
            c += ['v_cndmask_b32 v24, v28, v24, s[60:61]', 'v_cndmask_b32 v25, v29, v25, s[60:61]']
        c += [f'v_permlane16_swap_b32 v{d}, v{d+2}', f'v_permlane16_swap_b32 v{d+1}, v{d+3}']
        c.append((f'buffer_store_dwordx4 {vr(d,4)}, v{gH}, {sWS}, s{33 if mt == 1 else 34} offen offset:{1024*mt} {o.st_flav}', 'h2'))
    c.append((f'buffer_store_dwordx2 v[24:25], v{gST}, {sWS}, 0 offen {o.st_flav}', 'h2'))
    return c


def ab_loads(o):
    out = []
    for (reg, base) in ((AFR, WS_AF), (BFR, WS_BF)):
        for k in range(18):
            ld = f'buffer_load_dwordx4 {ar(reg+4*k,4)}, v{L16}, {sWS}, s63 offen offset:{1024*(k%4)} {o.ld_flav}'
            if k % 4 == 0:
                out.append(lambda p, ld=ld, x=base + 1024 * k: (p(f's_add_u32 s63, s62, {x}'), p(ld)))
            else:
                out.append(ld)
    return out


def fold_check(p, o):
    lp, dn = p.label('L_fc'), p.label('L_fcd')
    p(f'''s_mov_b32 s32, 0
    v_cmp_gt_u32 s[34:35], {NFOLD}, v{LANE}
    v_cmp_ne_u32 vcc, 1, v{vFC}
    s_and_b64 vcc, vcc, s[34:35]
    s_cbranch_vccz {dn}
    {lp}:''')
    p(f'''buffer_load_dword v{vFC}, v{vFCA}, {sDBG}, 0 offen sc1''', cond=True)
    p(f'''s_add_u32 s32, s32, 1
    s_cmp_gt_u32 s32, {SPIN_MAX}
    s_cbranch_scc1 {dn}
    s_waitcnt vmcnt(0)
    v_cmp_ne_u32 vcc, 1, v{vFC}
    s_and_b64 vcc, vcc, s[34:35]
    s_cbranch_vccnz {lp}
    {dn}:''')


def phase_t(p, o, st):
    t_addresses_first(p)
    p(f's_mul_i32 s62, s3, {8*768}')
    srds(p, False)
    for b in range(3):
        p(f'buffer_load_dwordx4 {vr(4+4*b,4)}, v{aXG}, {sX}, 0 offen offset:{128*b}')
    p(f'buffer_load_dword v252, v16, {sW}, 0 offen')
    p(f'buffer_load_dword v253, v17, {sWO}, 0 offen')
    st(p, 'karg')
    run(p, dma_item(0) + dma_item(1))
    t_addresses_rest(p)
    run(p, mix(ln1_code(), dma_item(2)))
    barrier(p, 'it1')
    st(p, 'h')
    r0, m0 = stage_qk(0)
    r1, m1 = stage_qk(1)
    run(p, frag16_reads(rF) + r0)
    run(p, mix(m0, dma_item(3)))
    run(p, r1 + m1)
    for s in range(2, 6):
        barrier(p, f'it{s}')
        r, m = stage_qk(s)
        run(p, r)
        run(p, mix(m, dma_item(s + 2)))
    st(p, 'qk')
    run(p, mix(s_partial_code(), dma_item(8)))
    barrier(p, 'it6')
    rs, cs = t_softmax_code()
    r, m = stage_vo(6)
    run(p, rs + r)
    xr, xc = resid_code()
    run(p, mix(mix(cs, m), dma_item(9)))
    barrier(p, 'it7')
    r, m = stage_vo(7)
    run(p, r + xr)
    run(p, mix(mix(m, xc), dma_item(10)))
    barrier(p, 'it8')
    r, m = stage_vo(8)
    run(p, r)
    if o.fused:
        p(f'buffer_load_dword v{vFC}, v{vFCA}, {sDBG}, 0 offen sc1')
    run(p, mix(m + pv_code(), dma_item(11)))
    barrier(p, 'it9')
    st(p, 'att')
    r, m = stage_vo(9)
    run(p, frag16_reads(rF) + r + m)
    for n in (10, 11):
        barrier(p, f'it{n}')
        r, m = stage_vo(n)
        run(p, r + m)
    st(p, 'oproj')
    run(p, ln2_a())
    barrier(p)
    run(p, ln2_b(o))
    st(p, 'h2st')


def fold(p, o, endl):
    srds(p, True)
    lb, lj = p.label('L_foldb'), p.label('L_foldj')
    A0, B0, RAW, ACC = 64, 112, 160, 24
    p(f'''
    s_sub_u32 s32, s2, {NMAIN}
    s_lshl_b32 s33, s32, 2
    s_add_u32 s33, s33, s3
    s_cmp_ge_u32 s32, 9
    s_cselect_b32 s34, 36, 0
    s_cselect_b32 s35, 768, 0
    s_sub_u32 s33, s33, s34
    s_mul_i32 s36, s33, 43
    s_lshr_b32 s36, s36, 8
    s_mul_i32 s37, s36, 6
    s_sub_u32 s37, s33, s37
    v_lshrrev_b32 v6, 2, v{II}
    v_and_b32 v7, 3, v{II}
    v_lshl_add_u32 v6, v6, 3, v7
    v_mul_u32_u24 v6, 1152, v6
    v_lshl_add_u32 v6, v{GG}, 4, v6
    s_mul_i32 s38, s36, {32*1152}
    s_add_u32 s38, s38, s35
    s_add_u32 s39, s38, {4*1152}
    ''')
    for ab in range(2):
        for kd in range(6):
            p(f'buffer_load_dwordx4 {vr(A0+24*ab+4*kd,4)}, v6, {sW}, s{38+ab} offen offset:{64*kd}')
    p(f'''s_cmp_ge_u32 s32, 9
    s_cbranch_scc1 {lb}
    v_mul_u32_u24 v7, 1152, v{II}
    v_lshl_add_u32 v7, v{GG}, 4, v7
    s_mul_i32 s38, s37, {32*1152}
    s_add_u32 s38, s38, 384
    s_add_u32 s39, s38, {16*1152}''')
    for par in range(2):
        for kd in range(6):
            p(f'buffer_load_dwordx4 {vr(B0+24*par+4*kd,4)}, v7, {sW}, s{38+par} offen offset:{64*kd}')
    p(f'''s_mul_i32 s38, s37, {12*1024}
    s_lshl_b32 s39, s36, 10
    s_add_u32 s38, s38, s39
    s_add_u32 s38, s38, {WS_AF}
    v_mov_b32 v8, v{L16}
    v_add_u32 v9, 6144, v{L16}
    s_mov_b32 s40, {fbits(SCALE_LOG2E)}
    s_waitcnt vmcnt(0)
    s_branch {lj}
    {lb}:''')
    p(f'''v_mul_u32_u24 v7, {8*384}, v{GG}
    v_lshl_add_u32 v7, v{II}, 2, v7
    s_lshl_b32 s38, s37, 6
    s_mov_b32 s41, 0x05040100
    s_mov_b32 s42, 0x07060302''')
    for kd in range(6):
        for e in range(8):
            p(f'buffer_load_dword v{RAW+8*kd+e}, v7, {sWO}, s38 offen offset:{384*e}')
        p(f's_add_u32 s38, s38, 12288')
    for kd in range(6):
        for q in range(4):
            for par in range(2):
                p(f'v_perm_b32 v{B0+24*par+4*kd+q}, v{RAW+8*kd+2*q+1}, v{RAW+8*kd+2*q}, s{41+par}')
    p(f'''s_mul_i32 s38, s37, {12*1024}
    s_lshl_b32 s39, s36, 10
    s_add_u32 s38, s38, s39
    s_add_u32 s38, s38, {WS_BF}
    v_lshrrev_b32 v8, 3, v{II}
    v_mul_u32_u24 v8, 6144, v8
    v_lshl_add_u32 v8, v{GG}, 8, v8
    v_and_b32 v9, 7, v{II}
    v_lshl_add_u32 v8, v9, 5, v8
    v_add_u32 v9, 16, v8
    s_mov_b32 s40, 1.0
    s_waitcnt vmcnt(0)
    s_nop 1
    {lj}:''')
    for kd in range(6):
        for par in range(2):
            for ab in range(2):
                acc = ACC + 8 * par + 4 * ab
                p(f'v_mfma_f32_16x16x32_bf16 {vr(acc,4)}, {vr(A0+24*ab+4*kd,4)}, {vr(B0+24*par+4*kd,4)}, {vr(acc,4) if kd else 0}')
    if o.fused:
        p(f'''v_mov_b32 v12, 0
        v_mov_b32 v13, 0
        v_mov_b32 v14, 0
        v_mov_b32 v15, 0
        s_lshl_b32 s39, s32, 12
        s_add_u32 s39, s39, {WS_FL}
        v_lshlrev_b32 v10, 4, v0
        buffer_store_dwordx4 v[12:15], v10, {sWS}, s39 offen sc1''')
    for par in range(2):
        for k in range(8):
            p(f'v_mul_f32 v{ACC+8*par+k}, s40, v{ACC+8*par+k}')
        for k in range(4):
            p(f'v_cvt_pk_bf16_f32 v{44+4*par+k}, v{ACC+8*par+2*k}, v{ACC+8*par+2*k+1}')
        p(f'buffer_store_dwordx4 {vr(44+4*par,4)}, v{8+par}, {sWS}, s38 offen {o.st_flav}')
    if o.fused:
        p(f'''s_waitcnt vmcnt(0)
        s_barrier
        s_lshl_b32 s39, s32, 2
        v_mov_b32 v10, {OOB}
        v_mov_b32 v11, s39
        v_cmp_eq_u32 vcc, 0, v0
        v_cndmask_b32 v10, v10, v11, vcc
        v_mov_b32 v11, 1
        buffer_store_dword v11, v10, {sDBG}, 0 offen sc1''')
    p('s_endpgm')


class R:
    O = 64; S = (160, 176); NEG = 192; P = (208, 216); T = 224
    L = 232; LT = 233; MREF = 234; TMP = 235
    K = (40, 41); V = (42, 43); DMA = 44; DMA5 = 45
    HQ = 46; RES = 47; GSTAT = 49; WQ = 50; RF = 56; RQ = 160
    WO = 24; RO = 25; WMS = 28; RMS = 29; GOUT = 32; WOB = 33
    Q = 0; FR = 48; NFR = 10
    sTILE = 40; sMODE = 46; sLDS = 52; sROT = 54


def s_addresses(p):
    p(f'''
    s_and_b32 s32, s2, 7
    s_mul_i32 s33, s32, {FRAME}
    s_lshr_b32 s34, s2, 3
    s_add_u32 s35, s34, s3
    s_mul_i32 s{R.sLDS}, s3, {3*TILE}
    ''')
    for i in range(6):
        p(f'''s_cmp_ge_u32 s35, 23
        s_cselect_b32 s36, 23, 0
        s_sub_u32 s35, s35, s36
        s_mul_i32 s36, s35, {TILE}
        s_add_u32 s{R.sTILE+i}, s36, s33
        s_cmp_eq_u32 s35, 22
        s_cselect_b32 s{R.sMODE+i}, 1, 0
        s_add_u32 s35, s35, 4''')
    p(f'''s_cmp_eq_u32 s3, 3
    s_cselect_b32 s{R.sMODE+5}, 2, s{R.sMODE+5}
    s_cselect_b32 s36, {OOB}, 0
    v_mov_b32 v{R.DMA}, v{L16}
    v_or_b32 v{R.DMA5}, s36, v{L16}''')
    for G in range(4):
        p(f'''s_add_u32 s36, s3, {G}
        s_and_b32 s36, s36, 3
        s_mul_i32 s{R.sROT+G}, s36, 3072''')
    p(f'''
    s_and_b32 s36, s3, 1
    s_lshl_b32 s36, s36, 7
    v_and_b32 v6, 3, v{LANE}
    v_bfe_u32 v7, v{LANE}, 2, 3
    v_lshrrev_b32 v8, 5, v{LANE}
    v_bfe_u32 v9, v{LANE}, 3, 1
    v_xor_b32 v9, v9, v8
    v_lshlrev_b32 v10, 4, v6
    v_lshl_add_u32 v10, v9, 6, v10
    v_lshl_add_u32 v10, v7, 7, v10
    v_xor_b32 v10, s36, v10
    v_add_u32 v{R.K[0]}, s{R.sLDS}, v10
    v_xor_b32 v{R.K[1]}, 128, v{R.K[0]}
    v_bfe_u32 v6, v{LANE}, 4, 1
    v_xor_b32 v7, v8, v6
    v_bfe_u32 v9, v{LANE}, 1, 1
    v_bfe_u32 v10, v{LANE}, 2, 2
    v_and_b32 v11, 1, v{LANE}
    v_lshlrev_b32 v11, 3, v11
    v_lshl_add_u32 v11, v10, 4, v11
    v_lshl_add_u32 v11, v9, 6, v11
    v_lshl_add_u32 v11, v7, 7, v11
    v_lshl_add_u32 v11, v6, 10, v11
    v_xor_b32 v11, s36, v11
    v_add_u32 v{R.V[0]}, s{R.sLDS}, v11
    v_xor_b32 v{R.V[1]}, 64, v{R.V[0]}
    ''')
    p(f'''
    v_lshrrev_b32 v6, 1, v{GG}
    v_and_b32 v7, 1, v{GG}
    v_lshrrev_b32 v9, 2, v{II}
    v_lshrrev_b32 v10, 3, v{II}
    v_and_b32 v11, 3, v{II}
    v_lshlrev_b32 v12, 4, v11
    v_xor_b32 v13, v9, v6
    v_xor_b32 v14, v7, v10
    v_lshl_add_u32 v15, v14, 6, v12
    v_lshl_add_u32 v15, v13, 7, v15
    v_lshl_add_u32 v{R.HQ}, v6, 10, v15
    v_xor_b32 v14, v6, v10
    v_lshl_add_u32 v15, v14, 6, v12
    v_lshl_add_u32 v15, v7, 3, v15
    v_lshl_add_u32 v15, v9, 7, v15
    v_xor_b32 v15, s36, v15
    s_mul_i32 s37, s3, 3072
    v_add_u32 v{R.RES}, s37, v15
    v_xor_b32 v{R.RES+1}, 128, v{R.RES}
    v_lshlrev_b32 v15, 3, v11
    v_lshl_add_u32 v{R.GSTAT}, v9, 8, v15
    ''')
    p(f'''
    {phi_code(13, II, 14)}
    v_mul_u32_u24 v12, 384, v{II}
    v_lshlrev_b32 v14, 4, v{GG}
    v_add_u32 v15, {L_QB}, v12
    v_xad_u32 v{R.RF}, v14, v13, v15
    v_xor_b32 v{R.RF+1}, 64, v{R.RF}
    v_xor_b32 v14, 16, v{R.RF}
    v_add_u32 v{R.RF+2}, 6144, v14
    v_xor_b32 v{R.RF+3}, 64, v{R.RF+2}
    v_lshlrev_b32 v14, 4, v6
    v_xor_b32 v13, v13, v14
    v_lshl_add_u32 v15, v7, 3, v15
    s_mul_i32 s37, s3, 96
    ''')
    for mt in range(3):
        p(f'''s_add_u32 s38, s37, {32*mt}
        v_xad_u32 v{R.WQ+2*mt}, s38, v13, v15
        v_xor_b32 v14, 16, v{R.WQ+2*mt}
        v_add_u32 v{R.WQ+2*mt+1}, 6144, v14''')
    p(f'''
    v_and_b32 v12, 31, v{LANE}
    {phi_code(13, 12, 14)}
    v_mul_u32_u24 v12, 384, v12
    v_add_u32 v12, {L_QB}, v12
    v_lshlrev_b32 v14, 4, v8
    v_xor_b32 v14, v13, v14
    ''')
    for q in range(12):
        if q % 3 == 0:
            p(f's_lshr_b32 s38, s{R.sROT+q//3}, 5')
        else:
            p(f's_add_u32 s38, s38, 32')
        p(f'v_xad_u32 v{R.RQ+q}, s38, v14, v12')
    p(f'v_lshl_add_u32 v12, v8, 3, v12')
    for gi in range(6):
        p(f'''s_add_u32 s38, s37, {16*gi}
        v_xad_u32 v{R.WOB+gi}, s38, v13, v12''')
    p(f'''v_add_u32 v{R.WO}, s{R.sLDS}, v{L16}
    v_lshlrev_b32 v12, 3, v{LANE}
    s_lshl_b32 s38, s3, 9
    s_add_u32 s38, s38, {L_MS}
    v_add_u32 v{R.WMS}, s38, v12''')
    for d in range(1, 4):
        p(f'''s_sub_u32 s38, s3, {d}
        s_and_b32 s38, s38, 3
        s_mul_i32 s39, s38, {3*TILE}
        v_add_u32 v{R.RO+d-1}, s39, v{L16}
        s_lshl_b32 s38, s38, 9
        s_add_u32 s38, s38, {L_MS}
        v_add_u32 v{R.RMS+d-1}, s38, v12''')
    p(f'''
    v_lshl_add_u32 v12, v7, 4, v{II}
    s_lshl_b32 s38, s34, 5
    v_add_u32 v12, s38, v12
    v_mul_u32_u24 v13, 384, v12
    v_lshl_add_u32 v13, v6, 4, v13
    s_mul_i32 s38, s32, 279936
    s_add_u32 s38, s38, s37
    v_add_u32 v13, s38, v13
    v_cmp_gt_u32 vcc, {N}, v12
    v_mov_b32 v14, {OOB}
    v_cndmask_b32 v{R.GOUT}, v14, v13, vcc
    s_mov_b32 s58, 0
    s_mov_b32 s59, -1
    ''')


def dma_tile(i, o):
    slot = i % 3
    v = R.DMA5 if i == 5 else R.DMA
    out = []
    for b in range(12):
        G, k = divmod(b, 3)
        ld = (f'buffer_load_dwordx4 v{v}, {sWS}, s53 offen offset:{k*1024} {o.ld_flav} lds', f'tile{i}g{G}')
        if k == 0:
            out.append(lambda p, G=G, ld=ld: (p(f's_add_u32 m0, s{R.sLDS}, {slot*TILE + G*3072}'),
                                              p(f's_add_u32 s53, s{R.sTILE+i}, s{R.sROT+G}'), p(ld[0], tag=ld[1])))
        else:
            out.append(ld)
    return out


def softmax_ops(i, sub):
    S, P = R.S[i & 1], R.P[i & 1]
    res, pend = [], []
    for k in range(0, 16, 2):
        t0, t1 = R.T + (k % 8), R.T + (k % 8) + 1
        if sub:
            res.append(f'v_sub_f32 v{S+k}, v{S+k}, v{R.MREF}')
            res.append(f'v_sub_f32 v{S+k+1}, v{S+k+1}, v{R.MREF}')
        res.append(f'v_exp_f32 v{t0}, v{S+k}')
        res += pend
        res.append(f'v_exp_f32 v{t1}, v{S+k+1}')
        pend = [f'v_add_f32 v{R.LT}, v{t0}, v{t1}'] if k == 0 else [f'v_add_f32 v{R.LT}, v{R.LT}, v{t0}', f'v_add_f32 v{R.LT}, v{R.LT}, v{t1}']
        pend.append(f'v_cvt_pk_bf16_f32 v{P+k//2}, v{t0}, v{t1}')
    return res + pend


def max_ops(S, dst):
    ops = [f'v_max3_f32 v{dst}, v{S}, v{S+1}, v{S+2}']
    for k in range(3, 15, 2):
        ops.append(f'v_max3_f32 v{dst}, v{dst}, v{S+k}, v{S+k+1}')
    ops += [f'v_max_f32 v{dst}, v{dst}, v{S+15}', f'v_mov_b32 v{R.TMP}, v{dst}',
            f'v_permlane32_swap_b32 v{R.TMP}, v{dst}', f'v_max_f32 v{dst}, v{dst}, v{R.TMP}']
    return ops


def cost(t):
    return 2 if isinstance(t, str) and t.startswith('v_exp') else 1


def spread(ops, gaps, load):
    tot = sum(cost(x) for x in ops) + sum(load[g] for g in gaps)
    per = tot / len(gaps)
    out = []
    k = 0
    acc = 0.0
    for n, g in enumerate(gaps):
        acc += per - load[g]
        while k < len(ops) and (acc >= cost(ops[k]) - 0.5 or n == len(gaps) - 1):
            out.append((g, ops[k]))
            acc -= cost(ops[k])
            load[g] += cost(ops[k])
            k += 1
    return out


def main_loop(p, o, early_dma, cold):
    NT, D = 6, o.D
    seq = [('qk', 0), ('qk', 1)]
    for i in range(NT):
        seq.append(('pv', i))
        if i + 2 < NT:
            seq.append(('qk', i + 2))
    mf, reads, start = [], [], {}
    for (k, i) in seq:
        start[(k, i)] = len(mf)
        slot = i % 3
        for n in range(12):
            f = R.FR + 4 * (len(mf) % R.NFR)
            if k == 'qk':
                S = R.S[i & 1]
                c = vr(S, 16) if n else ('0' if i < 2 else vr(R.NEG, 16))
                mf.append(f'v_mfma_f32_32x32x16_bf16 {vr(S,16)}, {ar(f,4)}, {ar(R.Q+4*n,4)}, {c}')
                reads.append([(f'ds_read_b128 {ar(f,4)}, v{R.K[n&1]} offset:{slot*TILE + 1024*n}', f'tile{i}g{n//3}')])
            else:
                mt, s = divmod(n, 2)
                a = R.O + 16 * mt
                c = vr(a, 16) if (i or s) else '0'
                mf.append(f'v_mfma_f32_32x32x16_bf16 {vr(a,16)}, {ar(f,4)}, {vr(R.P[i&1]+4*s,4)}, {c}')
                reads.append([(f'ds_read_b64_tr_b16 {ar(f+2*u,2)}, v{R.V[u]} offset:{slot*TILE + 2048*mt + 512*s + 256*u}', None) for u in range(2)])
    n_mf = len(mf)
    fill = {g: [] for g in range(-1, n_mf)}
    load = {g: 0.0 for g in range(-1, n_mf)}
    for n in range(n_mf):
        g = max(n - D, -1)
        for (t, w) in reads[n]:
            if w is not None:
                fill[g].append(lambda p, w=w: p.wait_tag(w))
            fill[g].append(t)
            load[g] += 1
        load[g] += 0.5
    for k, it in enumerate(early_dma):
        g = (k * 24) // len(early_dma)
        fill[g].append(it)
        load[g] += 1
    for i in range(NT - 3):
        items = dma_tile(i + 3, o)
        for b in range(12):
            g = start[('pv', i)] + 2 * (b // 2) + 1 + (b % 2)
            fill[g].append(items[b])
            load[g] += 1.3

    def mask_cb(p, i):
        lab, back = p.label('L_mask'), p.label('L_maskb')
        p(f's_cmp_lg_u32 s{R.sMODE+i}, 0\ns_cbranch_scc1 {lab}\n{back}:')
        S = R.S[i & 1]
        c = [f'{lab}:', 's_nop 15', f'v_mov_b32 v{R.TMP}, 0xff800000', f'v_cndmask_b32 v{S+12}, v{S+12}, v{R.TMP}, s[58:59]']
        c += [f'v_mov_b32 v{S+k}, v{R.TMP}' for k in (13, 14, 15)]
        if i == 5:
            c += [f's_cmp_eq_u32 s{R.sMODE+i}, 1', f's_cbranch_scc1 {back}']
            c += [f'v_mov_b32 v{S+k}, v{R.TMP}' for k in range(13)]
        c += [f's_branch {back}']
        cold.append(c)

    def rare_cb(p, i):
        lab, back = p.label('L_resc'), p.label('L_rescb')
        p(f'v_cmp_nle_f32 vcc, v{R.LT}, v{R.TMP+1}\ns_cbranch_vccnz {lab}\n{back}:')
        S, S2 = R.S[i & 1], R.S[(i + 1) & 1]
        dl, f = R.TMP + 2, R.TMP + 3
        c = [f'{lab}:', 's_nop 15', 's_nop 7'] + max_ops(S, dl)
        c += [f'v_max_f32 v{dl}, 0, v{dl}', f'v_add_f32 v{R.MREF}, v{R.MREF}, v{dl}', f'v_exp_f32 v{f}, -v{dl}']
        c += [f'v_sub_f32 v{R.NEG+k}, 0, v{R.MREF}' for k in range(16)]
        c += [f'v_sub_f32 v{S+k}, v{S+k}, v{dl}' for k in range(16)]
        if i + 1 < NT:
            c += [f'v_sub_f32 v{S2+k}, v{S2+k}, v{dl}' for k in range(16)]
        c += [f'v_mul_f32 v{R.L}, v{R.L}, v{f}']
        c += [f'v_mul_f32 v{R.O+k}, v{R.O+k}, v{f}' for k in range(96)]
        c += softmax_ops(i, False) + ['s_nop 1', f's_branch {back}']
        cold.append(c)

    for i in range(NT):
        if i == 0:
            ops = max_ops(R.S[0], R.MREF) + softmax_ops(0, True)
            g0 = start[('qk', 1)] + 1
        else:
            ops = softmax_ops(i, i == 1)
            if i == 1:
                ops = [f'v_sub_f32 v{R.NEG+k}, 0, v{R.MREF}' for k in range(16)] + ops
            g0 = start[('pv', i - 1)] + 1
        g1 = start[('pv', i)] - 1
        fill[g0].append(lambda p, i=i: mask_cb(p, i))
        for g, x in spread(ops, list(range(g0, g1 + 1)), load):
            fill[g].append(x)
        if i == 0:
            fill[g1].append(f'v_mov_b32 v{R.L}, v{R.LT}')
        else:
            fill[g1].append(lambda p, i=i: rare_cb(p, i))
            fill[g1].append(f'v_add_f32 v{R.L}, v{R.L}, v{R.LT}')
    p(f'v_mov_b32 v{R.TMP+1}, {fbits(4096.0)}')
    run(p, fill[-1])
    for n in range(n_mf):
        if n % 2 == 0 and n + 1 < n_mf:
            p(f'@touch a{R.FR + 4*((n+1) % R.NFR) + 3}')
        p(mf[n])
        run(p, fill[n])


def phase_s(p, o, st, cold):
    p(f'''s_lshr_b32 s34, s2, 3
    s_and_b32 s32, s2, 7
    s_mul_i32 s33, s32, {FRAME}
    s_mul_i32 s35, s34, {TILE}
    s_add_u32 s33, s33, s35
    s_add_u32 s53, s33, s{R.sROT}
    s_mov_b32 m0, s{R.sROT}
    s_lshl_b32 s35, s34, 11
    s_lshl_b32 s36, s32, 5
    s_add_u32 s35, s35, s36
    s_add_u32 s35, s35, {WS_ST}''')
    for k in range(3):
        p(f'buffer_load_dwordx4 v{R.DMA}, {sWS}, s53 offen offset:{1024*k} {o.ld_flav} lds', tag='qt')
    for nt in range(2):
        p(f'buffer_load_dwordx2 {vr(16+2*nt,2)}, v{R.GSTAT}, {sWS}, s35 offen offset:{1024*nt} {o.ld_flav}')
    skip = p.label('L_skip0')
    p(f's_cmp_eq_u32 s3, 0\ns_cbranch_scc1 {skip}')
    q = Prog()
    run(q, dma_tile(0, o))
    for i in q.ins:
        i.cond = True
        p.ins.append(i)
    p(f'{skip}:')
    barrier(p, 'qt')
    st(p, 'qtile')
    rd = [f'ds_read_b128 {ar(HF+24*nt+4*ks,4)}, v{R.HQ} offset:{2048*ks+512*nt}' for ks in range(6) for nt in range(2)]
    rr = [f'ds_read_b64 {vr(4+4*mt+2*nt,2)}, v{R.RES+(mt&1)} offset:{1024*mt+512*nt}' for mt in range(3) for nt in range(2)]
    run(p, rd + rr)
    mf = []
    for ks in range(6):
        for mt in range(3):
            for nt in range(2):
                acc = QA + 8 * mt + 4 * nt
                mf.append(f'v_mfma_f32_16x16x32_bf16 {vr(acc,4)}, {ar(AFR+24*mt+4*ks,4)}, {ar(HF+24*nt+4*ks,4)}, {vr(acc,4) if ks else 0}')
    run(p, mix(mf, dma_tile(1, o)))
    for mt in range(3):
        for nt in range(2):
            a, d = QA + 8 * mt + 4 * nt, KA + 4 * mt + 2 * nt
            p(f'''v_cvt_pk_bf16_f32 v{d}, v{a}, v{a+1}
            v_cvt_pk_bf16_f32 v{d+1}, v{a+2}, v{a+3}
            ds_write_b64 v{R.WQ+2*mt+nt}, {vr(d,2)}''')
    barrier(p)
    for k in range(12):
        p(f'ds_read_b128 {ar(R.Q+4*k,4)}, v{R.RQ+k}')
    st(p, 'qprime')
    main_loop(p, o, dma_tile(2, o), cold)
    st(p, 'loop')
    p(f'''v_mov_b32 v{R.TMP}, v{R.L}
    v_permlane32_swap_b32 v{R.TMP}, v{R.L}
    v_add_f32 v{R.MREF+1}, v{R.L}, v{R.TMP}
    ds_write_b64 v{R.WMS}, {vr(R.MREF,2)}''')
    for gi in range(6, 24):
        p(f'ds_write_b128 v{R.WO}, {vr(R.O+4*gi,4)} offset:{1024*gi}')
    barrier(p)
    for d in range(3):
        p(f'ds_read_b64 {vr(224+2*d,2)}, v{R.RMS+d}')
    for d in range(3):
        for gi in range(6):
            p(f'ds_read_b128 {vr(R.O+24*(d+1)+4*gi,4)}, v{R.RO+d} offset:{1024*(6*(d+1)+gi)}')
    M = 230
    p(f'''v_max3_f32 v{M}, v{R.MREF}, v224, v226
    v_max_f32 v{M}, v{M}, v228
    v_sub_f32 v{R.MREF}, v{R.MREF}, v{M}
    v_sub_f32 v224, v224, v{M}
    v_sub_f32 v226, v226, v{M}
    v_sub_f32 v228, v228, v{M}
    v_exp_f32 v{R.MREF}, v{R.MREF}
    v_exp_f32 v224, v224
    v_exp_f32 v226, v226
    v_exp_f32 v228, v228
    v_mul_f32 v{M}, v{R.MREF}, v{R.MREF+1}
    v_fmac_f32 v{M}, v224, v225
    v_fmac_f32 v{M}, v226, v227
    v_fmac_f32 v{M}, v228, v229
    v_rcp_f32 v{M}, v{M}
    v_mul_f32 v{R.MREF}, v{R.MREF}, v{M}
    v_mul_f32 v224, v224, v{M}
    v_mul_f32 v226, v226, v{M}
    v_mul_f32 v228, v228, v{M}''')
    for k in range(24):
        p(f'v_mul_f32 v{R.O+k}, v{R.O+k}, v{R.MREF}')
    for d in range(2):
        for k in range(24):
            p(f'v_fmac_f32 v{R.O+k}, v{R.O+24*(d+1)+k}, v{224+2*d}')
    for gi in range(6):
        for j in range(4):
            k = 4 * gi + j
            p(f'v_fmac_f32 v{R.O+k}, v{R.O+72+k}, v228')
        p(f'''v_cvt_pk_bf16_f32 v{160+2*gi}, v{R.O+4*gi}, v{R.O+4*gi+1}
        v_cvt_pk_bf16_f32 v{161+2*gi}, v{R.O+4*gi+2}, v{R.O+4*gi+3}
        ds_write_b64 v{R.WOB+gi}, {vr(160+2*gi,2)}''')
    barrier(p)
    st(p, 'comb')
    run(p, frag16_reads(R.RF))
    FA = 96
    for mt in range(3):
        for nt in range(2):
            a, s = FA + 8 * mt + 4 * nt, 4 + 4 * mt + 2 * nt
            p(f'''v_lshlrev_b32 v{a}, 16, v{s}
            v_and_b32 v{a+1}, 0xffff0000, v{s}
            v_lshlrev_b32 v{a+2}, 16, v{s+1}
            v_and_b32 v{a+3}, 0xffff0000, v{s+1}''')
            for j in range(4):
                p(f'v_fma_f32 v{a+j}, v{a+j}, v{17+2*nt}, v{16+2*nt}')
    for mt in range(3):
        for ks in range(6):
            for nt in range(2):
                acc = FA + 8 * mt + 4 * nt
                p(f'v_mfma_f32_16x16x32_bf16 {vr(acc,4)}, {ar(BFR+24*mt+4*ks,4)}, {ar(HF+24*nt+4*ks,4)}, {vr(acc,4)}')
    for mt in range(3):
        d = 176 + 4 * mt
        for nt in range(2):
            a = FA + 8 * mt + 4 * nt
            p(f'''v_cvt_pk_bf16_f32 v{d+2*nt}, v{a}, v{a+1}
            v_cvt_pk_bf16_f32 v{d+2*nt+1}, v{a+2}, v{a+3}''')
        p(f'''v_permlane16_swap_b32 v{d}, v{d+2}
        v_permlane16_swap_b32 v{d+1}, v{d+3}
        buffer_store_dwordx4 {vr(d,4)}, v{R.GOUT}, {sOUT}, 0 offen offset:{32*mt} {o.out_flav}''')
    st(p, 'out')


def grid_sync(p, o, st, endl):
    fold_check(p, o)
    lds = ab_loads(o)
    p(f's_mul_i32 s62, s3, {18*1024}')
    run(p, lds[:12])
    barrier(p, 'h2')
    p(f'''s_lshl_b32 s32, s2, 4
    s_add_u32 s32, s32, {WS_FL}
    v_mul_u32_u24 v20, 3072, v0
    v_add_u32 v20, s32, v20
    v_cmp_gt_u32 vcc, 8, v0
    v_mov_b32 v21, {OOB}
    v_cndmask_b32 v20, v21, v20, vcc
    v_mov_b32 v21, 1
    buffer_store_dword v21, v20, {sWS}, 0 offen sc1''')
    st(p, 'flag')
    p(f'''s_and_b32 s32, s2, 7
    s_cmp_eq_u32 s32, 7
    s_cbranch_scc1 {endl}''')
    run(p, lds[12:])
    s_addresses(p)
    lp, dn = p.label('L_poll'), p.label('L_polld')
    p(f'''v_min_u32 v20, 45, v{LANE}
    s_mul_i32 s32, s3, 46
    v_add_u32 v20, s32, v20
    v_lshlrev_b32 v20, 4, v20
    s_and_b32 s33, s2, 7
    s_mul_i32 s33, s33, 3072
    s_add_u32 s33, s33, {WS_FL}
    s_mov_b32 s32, 0
    {lp}:
    buffer_load_dword v21, v20, {sWS}, s33 offen sc1
    s_add_u32 s32, s32, 1
    s_cmp_gt_u32 s32, {SPIN_MAX}
    s_cbranch_scc1 {dn}
    s_waitcnt vmcnt(0)
    v_cmp_ne_u32 vcc, 1, v21
    s_cbranch_vccnz {lp}
    {dn}:
    s_waitcnt vmcnt(0)
    s_barrier''')
    st(p, 'go')


def emit_cold(p, cold):
    for c in cold:
        p.fresh()
        run(p, c)


def build(o):
    hdr = open('standalone__video_timesformer__vision.s.ref').read().split('; Override')[0]
    info = {}
    if o.fused:
        p = Prog()
        st = Stamps(o.stamps)
        cold = []
        st(p, 'start')
        setup(p, o, NMAIN + NFOLD, 'L_hot_end', 'L_end')
        p(f's_cmp_ge_u32 s2, {NMAIN}\ns_cbranch_scc1 L_fold')
        phase_t(p, o, st if o.stamps == 'T' else (lambda p, n: None))
        sy = st if o.stamps else (lambda p, n: None)
        if o.stamps and o.stamps != 'T':
            st(p, 'tdone')
        grid_sync(p, o, sy, 'L_fin')
        phase_s(p, o, st if o.stamps != 'T' else (lambda p, n: None), cold)
        p('L_fin:')
        st.flush(p, WS_STAMP)
        p('L_end:\ns_endpgm\nL_fold:')
        p.fresh()
        p('s_waitcnt lgkmcnt(0)')
        fold(p, o, 'L_end')
        p('L_hot_end:')
        emit_cold(p, cold)
        txt = p.text()
        info = dict(stats=p.stats, stamps=st.names)
        name = 'standalone__video_timesformer__vision_kernel'
        return module([(name, txt, 512, 102, 256)], [(name, NMAIN + NFOLD, 256, LDS_BYTES)], hdr), info
    p = Prog()
    st = Stamps(o.stamps)
    st(p, 'start')
    setup(p, o, NMAIN + NFOLD, 'L_hot_end1', 'L_end1')
    p(f's_cmp_ge_u32 s2, {NMAIN}\ns_cbranch_scc1 L_fold')
    phase_t(p, o, st)
    st.flush(p, WS_STAMP)
    p('L_end1:\ns_endpgm\nL_fold:')
    p.fresh()
    p('s_waitcnt lgkmcnt(0)')
    fold(p, o, 'L_end1')
    p('L_hot_end1:')
    q = Prog()
    q.nl = 1000
    st2 = Stamps(o.stamps)
    cold = []
    st2(q, 'start')
    setup(q, o, NMAIN, 'L_end2', 'L_end2')
    q('s_and_b32 s32, s2, 7\ns_cmp_eq_u32 s32, 7\ns_cbranch_scc1 L_end2')
    s_addresses(q)
    srds(q, False)
    q(f's_mul_i32 s62, s3, {18*1024}')
    run(q, ab_loads(o))
    phase_s(q, o, st2, cold)
    st2.flush(q, WS_STAMP + 65536)
    q('L_end2:\ns_endpgm')
    emit_cold(q, cold)
    t1, t2 = p.text(), q.text()
    info = dict(stats=(p.stats, q.stats), stamps=(st.names, st2.names))
    return module([('tsf_t_kernel', t1, 512, 102, 256), ('tsf_s_kernel', t2, 512, 102, 256)],
                  [('tsf_t_kernel', NMAIN + NFOLD, 256, LDS_BYTES), ('tsf_s_kernel', NMAIN, 256, LDS_BYTES)], hdr), info


def make(path, **kw):
    o = Opt()
    for k, v in kw.items():
        setattr(o, k, v)
    txt, info = build(o)
    open(path, 'w').write(txt)
    return info


if __name__ == '__main__':
    print(make('k_split.s', fused=False))
    print(make('k_fused.s', fused=True))
```

```python
import re

TRANS = ('v_exp_f32', 'v_log_f32', 'v_rcp_f32', 'v_rsq_f32', 'v_sqrt_f32', 'v_sin_f32', 'v_cos_f32', 'v_rcp_iflag_f32')


def regs_of(tok):
    tok = tok.strip()
    tok = tok.lstrip('-')
    if tok.startswith('abs(') or tok.startswith('neg('):
        tok = tok[4:-1]
    if tok.startswith('|'):
        tok = tok.strip('|')
    m = re.fullmatch(r'([vas])(\d+)', tok)
    if m:
        return [(m.group(1), int(m.group(2)))]
    m = re.fullmatch(r'([vas])\[(\d+):(\d+)\]', tok)
    if m:
        return [(m.group(1), r) for r in range(int(m.group(2)), int(m.group(3)) + 1)]
    if tok == 'vcc':
        return [('s', 'vcc_lo'), ('s', 'vcc_hi')]
    if tok in ('vcc_lo', 'vcc_hi', 'm0', 'exec_lo', 'exec_hi'):
        return [('s', tok)]
    if tok == 'exec':
        return [('s', 'exec_lo'), ('s', 'exec_hi')]
    return []


def split_ops(s):
    out, depth, cur = [], 0, ''
    for ch in s:
        if ch in '[(':
            depth += 1
        if ch in '])':
            depth -= 1
        if ch == ',' and depth == 0:
            out.append(cur.strip())
            cur = ''
        else:
            cur += ch
    if cur.strip():
        out.append(cur.strip())
    return out


class Ins:
    __slots__ = ('text', 'op', 'kind', 'rd', 'wr', 'tag', 'tag2', 'extra', 'cond', 'mf', 'ws', 'dpp', 'ops', 'mods', 'size')

    def __init__(self, text, tag=None, cond=False):
        self.text = text
        self.tag = tag
        self.tag2 = None
        self.cond = cond
        self.rd, self.wr = [], []
        self.mf = None
        self.ws = 1
        self.dpp = False
        t = text.split(';')[0].strip()
        if t.endswith(':'):
            self.op, self.kind, self.ws = t, 'label', 0
            return
        if t.startswith('.') or t.startswith('@'):
            self.op, self.kind, self.ws = t, 'dir', 0
            return
        parts = t.split(None, 1)
        op = parts[0]
        rest = parts[1] if len(parts) > 1 else ''
        ops = split_ops(rest)
        mods = ''
        if ops:
            last = ops[-1].split(None, 1)
            if len(last) > 1 and not op.startswith('s_waitcnt'):
                ops[-1], mods = last[0], last[1]
        self.op, self.ops, self.mods = op, ops, mods
        base = re.sub(r'_(e32|e64|dpp|sdwa)$', '', op)
        R = lambda i: regs_of(ops[i]) if i < len(ops) else []
        allsrc = lambda i0: [r for i in range(i0, len(ops)) for r in regs_of(ops[i])]
        if op.startswith('v_mfma'):
            self.kind = 'mfma'
            self.wr = R(0)
            self.rd = R(1) + R(2) + R(3)
            passes = 8 if '32x32' in op else 4
            self.mf = dict(passes=passes, d=R(0), ab=R(1) + R(2), c=R(3), op=op)
        elif op.startswith('v_'):
            self.kind = 'valu'
            self.dpp = op.endswith('_dpp') or 'quad_perm' in mods or 'row_' in mods
            if base.startswith('v_permlane') and 'swap' in base:
                self.wr = R(0) + R(1)
                self.rd = R(0) + R(1)
            elif base in ('v_add_co_u32', 'v_sub_co_u32', 'v_addc_co_u32'):
                self.wr = R(0) + R(1)
                self.rd = allsrc(2)
            elif base == 'v_nop':
                pass
            else:
                self.wr = R(0)
                self.rd = allsrc(1)
                if base in ('v_fmac_f32', 'v_dot2c_f32_bf16', 'v_writelane_b32', 'v_fma_mixlo_f16', 'v_fma_mixhi_f16') or self.dpp or op.endswith('_sdwa'):
                    self.rd = self.rd + R(0)
                if base.startswith('v_cmpx'):
                    raise ValueError('avoid v_cmpx')
        elif op.startswith('ds_'):
            self.kind = 'ds'
            if op.startswith('ds_read') or op.startswith('ds_bpermute') or op.startswith('ds_permute') or op.startswith('ds_swizzle'):
                self.wr = R(0)
                self.rd = allsrc(1)
            else:
                self.rd = allsrc(0)
        elif op.startswith('buffer_') or op.startswith('global_'):
            self.kind = 'vmem'
            islds = re.search(r'\blds\b', mods) is not None
            if op in ('buffer_wbl2', 'buffer_inv'):
                pass
            elif '_load' in op and not islds:
                self.wr = R(0)
                self.rd = allsrc(1)
                if 'd16' in op:
                    self.rd = self.rd + R(0)
            elif islds:
                self.rd = allsrc(0) + [('s', 'm0')]
                self.kind = 'dma'
            elif '_atomic' in op and 'sc0' in mods:
                self.wr = R(0)
                self.rd = allsrc(0)
            else:
                self.rd = allsrc(0)
        elif op.startswith('s_load') or op in ('s_memtime', 's_memrealtime'):
            self.kind = 'smem'
            self.wr = R(0)
            self.rd = allsrc(1)
        elif op == 's_nop':
            self.kind = 'nop'
            self.ws = int(ops[0], 0) + 1
        elif op == 's_waitcnt':
            self.kind = 'wait'
        elif op.startswith('s_cbranch') or op == 's_branch' or op in ('s_endpgm', 's_setpc_b64'):
            self.kind = 'branch'
            if 'vcc' in op:
                self.rd = regs_of('vcc')
        elif op in ('s_barrier', 's_sleep', 's_setprio'):
            self.kind = 'smisc'
        elif op.startswith('s_cmp') or op.startswith('s_bitcmp'):
            self.kind = 'salu'
            self.rd = allsrc(0)
        elif op.startswith('s_'):
            self.kind = 'salu'
            self.wr = R(0)
            self.rd = allsrc(1)
            if 'saveexec' in op:
                self.wr = self.wr + regs_of('exec')
            if op in ('s_addk_i32', 's_mulk_i32'):
                self.rd = self.rd + R(0)
        else:
            raise ValueError('unknown instruction ' + text)

    def base(self):
        return re.sub(r'_(e32|e64|dpp|sdwa)$', '', self.op)


class Prog:
    def __init__(self):
        self.ins = []
        self.nl = 0
        self.stats = {}

    def __call__(self, s, tag=None, cond=False):
        for l in s.split('\n'):
            l = l.strip()
            if l and not l.startswith(';'):
                self.ins.append(Ins(l, tag, cond))

    def label(self, base):
        self.nl += 1
        return f'{base}_{self.nl}'

    def wait_tag(self, tag):
        self.ins.append(Ins('@wait ' + str(tag)))

    def fresh(self):
        self.ins.append(Ins('@fresh'))

    def finalize(self):
        out = []
        vq, lq = [], []
        smem = []
        hist = []
        nnop = nwait = 0
        issued = set()

        def emit(i):
            out.append(i)
            hist.append(i)
            if len(hist) > 64:
                del hist[0]

        def need(q, pred):
            last = -1
            for k, o in enumerate(q):
                if pred(o):
                    last = k
            if last < 0:
                return None
            return sum(1 for o in q[last + 1:] if not o.cond), last

        for i in self.ins:
            if i.kind == 'dir' and i.op == '@fresh':
                vq, lq, smem, hist = [], [], [], []
                continue
            if i.kind == 'dir' and i.op.startswith('@raw'):
                r = Ins('s_nop 0'); r.text = i.op.split(None, 1)[1]
                emit(r)
                continue
            vm = lg = None
            if i.kind == 'dir' and i.op.startswith('@wait'):
                tag = i.op.split(None, 1)[1]
                if tag != 'lds_all' and tag not in issued:
                    print('WARNING: wait for a tag never issued:', tag)
                vm = need(vq, lambda o: str(o.tag) == tag or o.tag2 == tag)
                lg = need(lq, lambda o: str(o.tag) == tag or o.tag2 == tag or tag == 'lds_all')
            elif i.kind not in ('label', 'dir') or i.op.startswith('@touch'):
                touch = set(i.rd) | set(i.wr)
                if i.op.startswith('@touch'):
                    touch = set(regs_of(i.op.split(None, 1)[1]))
                vm = need(vq, lambda o: touch & set(o.wr))
                lg = need(lq, lambda o: touch & set(o.wr))
                if any(touch & set(o.wr) for o in smem):
                    lg = (0, len(lq) - 1)
            parts = []
            if vm is not None:
                n = min(vm[0], 63)
                parts.append(f'vmcnt({n})')
                del vq[:vm[1] + 1]
            if lg is not None:
                n = lg[0]
                if n > 15:
                    n = 15
                parts.append(f'lgkmcnt({n})')
                del lq[:lg[1] + 1]
                if n == 0:
                    lq.clear()
                    smem = []
            if parts:
                emit(Ins('s_waitcnt ' + ' '.join(parts)))
                nwait += 1
            if i.kind == 'dir' and i.op.startswith('@'):
                continue
            if i.kind == 'wait':
                m = re.search(r'vmcnt\((\d+)\)', i.text)
                if m:
                    n = int(m.group(1))
                    keep, cnt = [], 0
                    for o in reversed(vq):
                        if cnt < n:
                            keep.append(o)
                            if not o.cond:
                                cnt += 1
                    vq = list(reversed(keep))
                m = re.search(r'lgkmcnt\((\d+)\)', i.text)
                if m:
                    n = int(m.group(1))
                    if n == 0:
                        lq, smem = [], []
                    else:
                        keep, cnt = [], 0
                        for o in reversed(lq):
                            if cnt < n:
                                keep.append(o)
                                if not o.cond:
                                    cnt += 1
                        lq = list(reversed(keep))
            req = self.hazard(i, hist)
            while req > 0:
                k = min(req, 16)
                emit(Ins(f's_nop {k - 1}'))
                nnop += k
                req -= k
            emit(i)
            issued.add(str(i.tag)); issued.add(i.tag2)
            if i.kind in ('vmem', 'dma'):
                vq.append(i)
            elif i.kind == 'ds':
                lq.append(i)
            elif i.kind == 'smem':
                smem.append(i)
        self.stats = dict(n=len(out), nop_states=nnop, waits=nwait)
        seen = {('v', 0)}
        for i in out:
            for r in i.rd:
                if r[0] in 'va' and r not in seen and not (i.kind == 'valu' and r in i.wr):
                    print('WARNING: read before any write:', r, i.text)
                    seen.add(r)
            seen.update(i.wr)
        return out

    @staticmethod
    def hazard(i, hist):
        if i.kind in ('label', 'dir', 'nop', 'wait'):
            return 0
        req = 0
        dist = 0
        rd, wr = set(i.rd), set(i.wr)
        ib = i.base()
        for p in reversed(hist):
            if dist >= 20:
                break
            need = 0
            pw = set(p.wr)
            if p.kind == 'valu':
                pb = p.base()
                pv = {r for r in pw if r[0] in 'va'}
                ps = {r for r in pw if r[0] == 's'}
                if i.kind == 'mfma' and pv & rd:
                    need = max(need, 2)
                if i.kind == 'valu':
                    if i.dpp and pv & rd:
                        need = max(need, 2)
                    if ib.startswith('v_permlane') and pv & rd:
                        need = max(need, 2)
                    if ib in ('v_readlane_b32', 'v_readfirstlane_b32') and pv & rd:
                        need = max(need, 1)
                    if pb in TRANS and ib not in TRANS and pv & rd:
                        need = max(need, 1)
                    if ps & rd:
                        need = max(need, 4 if ib in ('v_readlane_b32', 'v_writelane_b32') else 2)
                    if (p.op.endswith('_sdwa') or pb in ('v_fma_mixlo_f16', 'v_fma_mixhi_f16')) and pv & (rd | wr):
                        need = max(need, 1)
                    if pb.startswith('v_dot') and pv & (rd | wr):
                        if not (pb == ib and not (pv & set(regs_of(i.ops[1]) + regs_of(i.ops[2])))):
                            need = max(need, 3)
                if pb.startswith('v_dot') and i.kind in ('mfma', 'ds', 'vmem', 'dma') and pv & rd:
                    need = max(need, 3)
                if i.kind in ('vmem', 'dma') and ps & rd:
                    need = max(need, 5)
                if i.kind in ('ds', 'vmem', 'dma') and pb in TRANS and pv & rd:
                    need = max(need, 1)
            elif p.kind == 'mfma':
                d = set(p.mf['d'])
                four = p.mf['passes'] == 4
                if i.kind == 'mfma':
                    if d & set(i.mf['ab']):
                        need = max(need, 8 if four else 12)
                    if d & set(i.mf['c']):
                        if not (i.mf['c'] == p.mf['d'] and i.mf['op'] == p.mf['op']):
                            need = max(need, 6 if four else 10)
                    elif d & wr:
                        need = max(need, 6 if four else 10)
                elif i.kind in ('valu', 'ds', 'vmem', 'dma'):
                    if d & (rd | wr):
                        need = max(need, 8 if four else 12)
                    if set(p.mf['c']) & wr:
                        need = max(need, 3 if four else 7)
            elif p.kind == 'salu':
                if ('s', 'm0') in pw and i.kind == 'dma':
                    need = max(need, 1)
            elif p.kind == 'vmem':
                if 'store' in p.op and ('x3' in p.op or 'x4' in p.op):
                    data = set(regs_of(p.ops[0] if p.op.startswith('buffer') else p.ops[1]))
                    if data & wr:
                        need = max(need, 2)
            req = max(req, need - dist)
            dist += p.ws
        return req

    def text(self, base=None, pages=0, align=False, stop=None):
        out = self.finalize()
        if base is not None:
            out = layout(out, base, pages, align, stop, self.stats)
        s = []
        for i in out:
            s.append(i.text if i.kind == 'label' else '    ' + i.text)
        return '\n'.join(s) + '\n'


def interleave(mfmas, fillers, start=0):
    by = {}
    for g, item in fillers:
        by.setdefault(g, []).append(item)
    out = []
    for item in by.get(-1, []):
        out.append(item)
    for k, m in enumerate(mfmas):
        out.append(m)
        for item in by.get(k, []):
            out.append(item)
    return out


def sizes(ins):
    import subprocess
    src = '.amdgcn_target "amdgcn-amd-amdhsa--gfx950"\n.text\n' + '\n'.join(i.text for i in ins) + '\n'
    for k in range(16):
        if f'L_page{k}' in src and f'L_page{k}:' not in src:
            src += f'L_page{k}:\n'
    r = subprocess.run(['llvm-mc', '-triple=amdgcn-amd-amdhsa', '-mcpu=gfx950', '-show-encoding'], input=src, capture_output=True, text=True)
    assert r.returncode == 0, r.stderr
    enc = re.findall(r'; encoding: \[([^\]]*)\]', r.stdout)
    real = [i for i in ins if i.kind not in ('label', 'dir')]
    assert len(enc) == len(real), (len(enc), len(real))
    for i in ins:
        i.size = 0
    for i, x in zip(real, enc):
        i.size = len(x.split(','))


NO_E64 = ('v_readfirstlane_b32', 'v_permlane16_swap_b32', 'v_permlane32_swap_b32', 'v_nop', 'v_dot2c_f32_bf16', 'v_accvgpr_mov_b32')


def layout(ins, base, pages, align, stop, stats):
    sizes(ins)
    out, off, page, fixed, left = [], base, 0, 0, 0
    active = True
    for i in ins:
        if i.kind == 'label' and stop and i.text.startswith(stop):
            active = False
        if active and i.size and page < pages and off >= 4096 * (page + 1):
            lab = Ins(f'L_page{page}:'); lab.size = 0
            br = Ins(f's_cbranch_execz L_pageret{page}'); br.size = 4
            out += [lab, br]; off += 4; page += 1
        if active and align and i.size == 8 and off % 32 == 28:
            back, done = 0, False
            for q in reversed(out):
                back += q.size
                if back > 28:
                    break
                if q.size == 4 and q.kind == 'valu' and q.op not in NO_E64 and not q.op.endswith('_e64'):
                    q.text = q.text.replace(q.op, q.op + '_e64', 1); q.op += '_e64'; q.size = 8
                    off += 4; done = True; fixed += 1
                    break
            if not done:
                left += 1
        out.append(i)
        off += i.size
    assert page == pages, (page, pages)
    stats.update(bytes=off - base, aligned=fixed, straddling=left)
    return out
```

```python
import re
from emit import Ins, Prog, TRANS
from sim import DSOCC

PEN = {'ds': 8, 'dma': 16, 'vmem': 16}

class Node:
    __slots__ = ('ins', 'rd', 'wr', 'preds', 'succs', 'npred', 'prio', 'idx', 'kind', 'lo', 'hi', 'need', 'done', 'cost', 'bias', 'opt', 'occ')

class Region:
    def __init__(self):
        self.nodes = []
        self.bars = []
        self.chain = True
        self.occ = 64
        self.batch = 1
        self.stamp = None
        self.name = 'B'
        self.alive = True

    def add(self, item, lo=None, hi=None, tag=None, bias=0, opt=False, xrd=(), xwr=(), occ=None):
        if isinstance(item, tuple):
            item, tag = item
        n = Node()
        n.ins = [Ins(l.strip(), tag) for l in item.split('\n') if l.strip()]
        n.rd, n.wr = set(), set()
        for i in n.ins:
            n.rd |= set(i.rd) - n.wr
            n.wr |= set(i.wr)
        n.rd |= set(xrd)
        n.wr |= set(xwr)
        n.kind = [i for i in n.ins if i.kind not in ('label', 'dir')][-1].kind
        n.opt = opt
        n.occ = occ
        n.preds, n.succs = {}, []
        n.idx = len(self.nodes)
        n.lo, n.hi = lo, hi
        n.bias = bias
        if n.kind in ('ds', 'dma', 'vmem'):
            if lo is None:
                n.lo = len(self.bars) - 1
            if hi is None:
                n.hi = len(self.bars) if n.kind != 'vmem' else -1
        self.nodes.append(n)
        return n

    def run(self, items, **kw):
        for it in items:
            self.add(it, **kw)

    def barrier(self, *tags):
        n = self.add(''.join(f'@wait {t}\n' for t in tags) + 's_barrier')
        if self.stamp:
            q = Prog()
            self.stamp(q, f'{self.name}{len(self.bars)}')
            n.ins += q.ins
        n.kind = 'bar'
        self.bars.append(n)
        return len(self.bars) - 1

    def nb(self):
        return len(self.bars)

    def edge(self, a, b, lat):
        if a is b:
            return
        if a not in b.preds:
            a.succs.append(b)
            b.preds[a] = lat
        else:
            b.preds[a] = max(b.preds[a], lat)

    def build(self, vlat):
        lastw, readers = {}, {}
        prev = {'ds': None, 'vm': None}
        for n in self.nodes:
            for r in n.rd:
                if r in lastw:
                    p = lastw[r]
                    lat = {'mfma': 40, 'ds': 70, 'vmem': vlat}.get(p.kind, 4)
                    if p.kind == 'mfma' and n.kind == 'mfma' and r in n.ins[0].mf['c']:
                        lat = 16
                    self.edge(p, n, lat)
            for r in n.wr:
                if r in lastw:
                    self.edge(lastw[r], n, 4)
                for q in readers.get(r, []):
                    self.edge(q, n, 4)
            for r in n.rd:
                readers.setdefault(r, []).append(n)
            for r in n.wr:
                lastw[r] = n
                readers[r] = []
            if n.kind in ('dma', 'vmem'):
                if prev['vm'] is not None:
                    self.edge(prev['vm'], n, n.occ or self.occ)
                prev['vm'] = n
        for k in range(1, len(self.bars)):
            self.edge(self.bars[k - 1], self.bars[k], 24)
        for b in self.bars:
            b.need = []
        for n in self.nodes:
            if n.kind in ('ds', 'dma', 'vmem'):
                if n.lo is not None and n.lo >= 0:
                    self.edge(self.bars[n.lo], n, 24)
                if n.hi is not None and 0 <= n.hi < len(self.bars):
                    self.edge(n, self.bars[n.hi], 100 if n.kind == 'ds' else vlat + 64)
                    self.bars[n.hi].need.append(n)
        order, cnt = [], {n: len(n.preds) for n in self.nodes}
        stack = [n for n in self.nodes if not n.preds]
        while stack:
            n = stack.pop()
            order.append(n)
            for s in n.succs:
                cnt[s] -= 1
                if cnt[s] == 0:
                    stack.append(s)
        assert len(order) == len(self.nodes), 'dependency cycle'
        order.sort(key=lambda n: 0)
        rank = {n: k for k, n in enumerate(order)}
        mf = [n for n in self.nodes if n.kind == 'mfma']
        nxt = {a: b for a, b in zip(mf, mf[1:])}
        for n in self.nodes:
            n.prio = 0
        for it in range(60):
            ch = False
            for n in reversed(order):
                v = max([s.prio + s.preds[n] for s in n.succs] + [4])
                if n in nxt and self.chain:
                    v = max(v, nxt[n].prio + (32 if n.ins[0].mf['passes'] == 8 else 16))
                v += n.bias
                if v != n.prio:
                    n.prio = v
                    ch = True
            if not ch:
                break

    def backward(self, depth):
        cnt = {n: len(n.succs) for n in self.nodes}
        ready = [n for n in self.nodes if not n.succs]
        Rr = {}
        cur = pipe = lds = 0
        nxtkind = None
        def dur(n):
            if n.kind == 'mfma':
                return 8
            if n.kind == 'bar':
                return 28
            d = 0
            for i in n.ins:
                if i.kind in ('dir', 'label'):
                    continue
                b = i.base()
                d += 8 if (b in TRANS or b.startswith('v_permlane')) else 4 * max(i.ws, 1)
            return d
        def feas(n):
            r = cur + dur(n)
            if n.kind == 'valu' and nxtkind in PEN:
                r += PEN[nxtkind]
            for q in n.succs:
                if not q.opt:
                    r = max(r, Rr[q] + q.preds[n])
            if n.kind == 'mfma':
                r = max(r, pipe + (32 if n.ins[0].mf['passes'] == 8 else 16))
            if n.kind == 'ds':
                r = max(r, lds + DSOCC.get(n.ins[0].op, 16))
            return r
        while ready:
            ready.sort(key=lambda n: (not n.opt, -depth[n], -n.idx))
            if ready[0].opt:
                n = ready[0]
                Rr[n] = 0
            else:
                top = ready[0]
                best, br = top, feas(top)
                if br > cur + dur(top):
                    for n in ready[1:60]:
                        r = feas(n)
                        if r <= br - dur(top) + 2 and (best is top or r - dur(n) < bb):
                            best, bb = n, r - dur(n)
                            if bb <= cur:
                                break
                n = best
                r = feas(n)
                Rr[n] = cur = r
                nxtkind = n.kind
                if n.kind == 'mfma':
                    pipe = r
                if n.kind == 'ds':
                    lds = r
            ready.remove(n)
            for q in n.preds:
                cnt[q] -= 1
                if cnt[q] == 0:
                    ready.append(q)
        for n in self.nodes:
            n.prio = Rr[n]

    def schedule(self, p, passes=2, **kw):
        self.build(kw.get('vlat', 450))
        best = None
        for k in range(passes + 1):
            log = []
            q = Prog()
            left = self.forward(q, log=log, **kw)
            if best is None or self.t_end < best[0]:
                best = (self.t_end, q.ins, left, [(i, i.tag2) for i in q.ins])
            if k < passes:
                depth = {n: 0 for n in self.nodes}
                for ts, te, n in log:
                    depth[n] = ts
                self.backward(depth)
        self.t_end = best[0]
        for i, t2 in best[3]:
            i.tag2 = t2
        p.ins += best[1]
        return best[2]

    def forward(self, p, t0=0, vlat=450, pending_vm=(), ta0=0, log=None, dsq=6, vqd=3, warm=False, block=False):
        t, pipe, lds, ta, last_act, ramp_end = t0, 0, 0, ta0, t0, (t0 if warm else t0 + 130)
        lv = -100
        dq, vq = [], []
        dwaited = vwaited = -1
        pos = {}
        hist = []
        for n in self.nodes:
            n.npred = len(n.preds)
            n.done = None
        ready = [n for n in self.nodes if n.npred == 0]
        out = []

        def mem_need(n):
            dn = vn = -1
            srcs = n.need if n.kind == 'bar' else [q for q in n.preds if q.kind in ('ds', 'vmem') and (q.wr & (n.rd | n.wr))]
            for q in srcs:
                if q.kind == 'ds':
                    dn = max(dn, pos[q])
                else:
                    vn = max(vn, pos[q])
            return dn, vn

        def earliest(n):
            e = t
            dn, vn = mem_need(n)
            w = 0
            if dn > dwaited:
                e = max(e, dq[dn][2]); w = 4
            if vn > vwaited:
                e = max(e, vq[vn][2]); w = 4
            e += w
            i = [x for x in n.ins if x.kind != 'dir'][0]
            h = Prog.hazard(i, hist) - (1 if w else 0)
            if h > 0:
                e += 4 * h
            b = i.base()
            if n.kind == 'mfma':
                e = max(e, pipe)
            elif n.kind == 'valu':
                if (b.startswith('v_pk_') and b.endswith('f32')) or b.startswith('v_dot'):
                    e = max(e, pipe)
                if e < ramp_end or e - max(last_act, pipe) > 20:
                    e += 10
            elif n.kind == 'ds':
                pend = [c for c in dq if c[1] > e]
                if len(pend) >= dsq:
                    e = max(e, pend[-dsq][1])
                e = max(e, lv + 8)
            elif n.kind in ('dma', 'vmem'):
                pend = [c for c in vq if c[1] > e]
                if block:
                    e = max(e, ta0 - 64 * vqd)
                dep = vqd if t - lv >= 12 else self.batch
                if len(pend) >= dep:
                    e = max(e, pend[-dep][1])
                e = max(e, lv + 16)
            return e, dn, vn, w

        left = sum(1 for n in self.nodes if not n.opt)
        while left:
            ready.sort(key=lambda n: (n.opt, -n.prio, n.idx))
            best = None
            top = ready[0]
            et = earliest(top)
            cand = [(top, et)]
            if et[0] - et[3] > t:
                for n in ready[1:40]:
                    cand.append((n, earliest(n)))
            best = cand[0]
            for n, e in cand[1:]:
                dur = 8 if n.kind == 'mfma' else 4 * len(n.ins)
                if n.kind == 'valu' and top.kind in PEN:
                    dur += PEN[top.kind]
                if e[0] + dur <= et[0] - et[3] + 3 and (best is cand[0] or e[0] < best[1][0]):
                    best = (n, e)
                    if e[0] <= t:
                        break
            if best[0].kind == 'valu' and t - lv >= 8 and pipe > t:
                for n in ready[:30]:
                    if n.kind in PEN and not n.opt:
                        e = earliest(n)
                        if e[0] <= t:
                            best = (n, e)
                            break
            if self.alive and best[0].kind not in ('valu', 'mfma') and t >= ramp_end:
                span = 28 if best[0].kind == 'bar' else 4
                if best[1][0] + span - max(last_act, pipe) > 14:
                    for n in ready[:60]:
                        if n.kind == 'mfma' or (n.kind == 'valu' and best[0].kind != 'bar' and (best[0].kind not in PEN or t + 4 + PEN[best[0].kind] <= best[1][0])):
                            e = earliest(n)
                            if e[0] <= t + 4:
                                best = (n, e)
                                break
            n, (e, dn, vn, _w) = best
            ready.remove(n)
            n.done = True
            if not n.opt:
                left -= 1
            if dn > dwaited:
                k = dn
                while k + 1 < len(dq) and dq[k + 1][2] <= e - 4:
                    k += 1
                out.append(('waitds', dq[k][0])); dwaited = k
                hist.append(Ins('s_nop 0'))
            if vn > vwaited:
                out.append(('waitvm', vq[vn][0])); vwaited = vn
                hist.append(Ins('s_nop 0'))
            h = Prog.hazard([x for x in n.ins if x.kind != 'dir'][0], hist)
            if h > 0:
                hist.append(Ins(f's_nop {h-1}'))
            t = e
            ts = t
            for i in n.ins:
                if i.kind in ('dir', 'label'):
                    continue
                b = i.base()
                if i.kind == 'valu':
                    if t - max(last_act, pipe) > 30:
                        ramp_end = t + 120
                    t += 8 if (b in TRANS or b.startswith('v_permlane')) else 4
                    last_act = lv = t
                elif i.kind == 'mfma':
                    if t - max(last_act, pipe) > 20:
                        ramp_end = t + 130
                    pipe = t + (32 if i.mf['passes'] == 8 else 16)
                    t += 8
                    last_act = t
                elif i.kind == 'ds':
                    lds = max(lds, t) + DSOCC.get(i.op, 16)
                    pos[n] = len(dq)
                    dq.append((n, lds, lds + 44))
                    t += 4
                elif i.kind in ('dma', 'vmem'):
                    occ = 88 if 'store' in i.op else (n.occ or self.occ) if ('x4' in i.op or 'x2' in i.op) else 32
                    ta = max(ta, t) + occ
                    d = ta + vlat
                    if vq:
                        d = max(d, vq[-1][2])
                    pos[n] = len(vq)
                    vq.append((n, ta, d))
                    t += 4
                elif i.op == 's_barrier':
                    t += 24
                else:
                    t += 4 * max(i.ws, 1)
                hist.append(i)
            del hist[:-40]
            out.append(('node', n))
            if log is not None:
                log.append((ts, t, n))
            for s in n.succs:
                s.npred -= 1
                if s.npred == 0:
                    ready.append(s)
        uid = [0]
        for kind, n in out:
            if kind in ('waitds', 'waitvm'):
                uid[0] += 1
                n.ins[-1].extra = getattr(n.ins[-1], 'extra', None)
        tags = {}
        for kind, n in out:
            if kind != 'node':
                tags[n] = f'_w{id(n)}'
        for kind, n in out:
            if kind == 'node':
                for i in n.ins:
                    if n in tags and i is n.ins[-1]:
                        i.tag2 = tags[n]
                    p.ins.append(i)
            else:
                p.wait_tag(tags[n])
        self.t_end = t
        return ['\n'.join(i.text for i in n.ins) for n in self.nodes if not n.done]
```

```python
import re, sys
from emit import Ins, TRANS
DSOCC = {'ds_read_b128': 16, 'ds_read_b64': 8, 'ds_read_b64_tr_b16': 8, 'ds_write_b128': 52, 'ds_write_b64': 24, 'ds_write_b32': 16, 'ds_read_b32': 8}
def simulate(ins, t0=0, vlat=450, marks=None, verbose=None, dsq=6, vq_depth=3, lat_override=None):
    t = t0; pipe = 0; lds = 0; ta = 0; last_act = t0; ramp_end = -1; lv = -100
    dq, vq = [], []
    out = []
    skip = None
    for i in ins:
        if i.kind == 'label':
            if marks is not None: marks.append((i.text, t))
            continue
        if i.kind == 'dir': continue
        t_in = t
        b = i.base()
        if i.kind == 'valu':
            if (b.startswith('v_pk_') and b.endswith('f32')) or b.startswith('v_dot'): t = max(t, pipe)
            if t - max(last_act, pipe) > 20: ramp_end = t + 130
            c = 8 if (b in TRANS or b.startswith('v_permlane')) else 4
            if t < ramp_end: c = max(c, 16)
            t += c; last_act = t; lv = t
        elif i.kind == 'mfma':
            if t - max(last_act, pipe) > 20: ramp_end = t + 130
            s = max(t, pipe); pipe = s + (32 if i.mf['passes'] == 8 else 16); t = s + 8; last_act = t
        elif i.kind == 'ds':
            t = max(t, lv + 8)
            pend = [c for c in dq if c[0] > t]
            if len(pend) >= dsq: t = max(t, pend[-dsq][0])
            occ = DSOCC.get(i.op, 16)
            lds = max(lds, t) + occ
            dq.append((lds, lds + 44)); t += 4
        elif i.kind in ('vmem', 'dma'):
            t = max(t, lv + 16)
            pend = [c for c in vq if c[0] > t]
            if len(pend) >= vq_depth: t = max(t, pend[-vq_depth][0])
            occ = 64 if ('x4' in i.op or 'x2' in i.op) else 32
            if 'store' in i.op: occ = 88
            ta = max(ta, t) + occ
            lat = vlat
            if lat_override:
                for k, v in lat_override.items():
                    if k in i.text or k == str(i.tag): lat = v
            done = ta + lat
            if vq: done = max(done, vq[-1][1])
            vq.append((ta, done)); t += 4
        elif i.kind == 'wait' or i.text.startswith('s_waitcnt'):
            m = re.search(r'vmcnt\((\d+)\)', i.text)
            if m:
                n = int(m.group(1))
                if len(vq) > n: t = max(t, vq[len(vq) - n - 1][1])
            m = re.search(r'lgkmcnt\((\d+)\)', i.text)
            if m:
                n = int(m.group(1))
                if len(dq) > n: t = max(t, dq[len(dq) - n - 1][1])
            t += 4
        elif i.kind == 'nop': t += 4 * i.ws
        elif i.op == 's_barrier': t += 24
        else: t += 4
        out.append((t_in, t, i.text))
    return t, out
if __name__ == '__main__':
    import gen4 as gen2
    from emit import Prog
    o = gen2.Opt()
    for a in sys.argv[2:]:
        k, v = a.split('='); setattr(o, k, eval(v))
    class Mark:
        def __init__(self): self.on = False; self.names = []
        def __call__(self, p, name): p(f'M_{name}:')
        def flush(self, p, b): pass
    p = Prog(); st = Mark(); cold = []
    gen2.setup(p, o)
    fq = gen2.phase_t(p, o, st); gen2.grid_sync(p, o, st, fq); gen2.phase_s(p, o, st, cold)
    ins = p.finalize()
    marks = []
    t, out = simulate(ins, marks=marks, lat_override={'s[4:7]': 1500, 'it0': 1700, 'h2': 1000})
    prev = 0
    for n, x in marks:
        if n.startswith('M_'):
            print('%-10s %6d  +%d' % (n[2:-1], x, x - prev)); prev = x
    if len(sys.argv) > 1 and sys.argv[1] != '-':
        a, b = sys.argv[1].split(':')
        ta = [x for n, x in marks if n == f'M_{a}:'][0]; tb = [x for n, x in marks if n == f'M_{b}:'][0]
        for (t0, t1, txt) in out:
            if ta <= t0 < tb: print('%6d %4d  %s' % (t0, t1 - t0, txt))
```

```python
import sys, struct
from emit import *
from asm import module
from sched import Region

T, N, C = 7, 729, 192
TILE = 12288
FRAME = 23 * TILE
NMAIN, NFOLD = 184, 36
XBYTES = 1959552
WS_H2 = 0
WS_ST = 7 * FRAME
WS_AF = WS_ST + NMAIN * 256
WS_BF = WS_AF + 73728
WS_FL = WS_BF + 73728
WS_END = WS_FL + NFOLD * 1024
WS_STAMP = 4 << 20
OOB = 0x7fff0000
L_XB, L_HB, L_SB, L_STP = 122880, 135168, 147456, 151552
SLOT = [24576 * (n % 5) for n in range(12)]
L_YB, L_QB, L_MS = 135168, 147456, 159744
LDS_BYTES = L_MS + 2048
SCALE_LOG2E = (C ** -0.5) * 1.4426950408889634
SPIN_MAX = 1 << 18


def fbits(x):
    return '0x%08x' % struct.unpack('<I', struct.pack('<f', x))[0]


def vr(b, n=1):
    return f'v[{b}:{b+n-1}]' if n > 1 else f'v{b}'


def ar(b, n=1):
    return f'a[{b}:{b+n-1}]' if n > 1 else f'a{b}'


def lines(s):
    return [l.strip() for l in s.split('\n') if l.strip()]


sX, sW, sWS, sWO, sOUT, sDBG, sCODE = 's[4:7]', 's[8:11]', 's[12:15]', 's[16:19]', 's[20:23]', 's[24:27]', 's[28:31]'
LANE, II, GG, L16 = 1, 2, 3, 32
aXG = 192; aQK = 193; aV = 196; aO = 199; tQK = 202; tV = 208; wH = 211; wX = 212; rF = 213; rFP = 217; rX = 219; wS = 225; rS = 226; tQK2 = 22
gH = 192; wST = 193; rST = 194; gST = 195; wA = 202; vFC = 211
QA, KA, VA, TM = 64, 88, 112, 136
AT = KA
QBF, KBF = 160, 176
HF, HP, WF = 0, 48, (72, 96)
AFR, BFR = 112, 184
F = 228
G = 235


class R:
    O = 64; S = (160, 176); NEG = 192; P = (208, 216); T = 224
    L = 232; LT = 233; MREF = 234; TMP = 235
    FA = 4
    K = (28, 29); V = (30, 31); DMA = 32; DMA5 = 33; WQ = 34; RF = 40; WO = 44; RO = 45; WMS = 48; RMS = 49
    WOB = 52; GOUT = 58; RY = 59; HQ = 60; RES = 61; GSTAT = 63; RQ = 240; WQP = 196
    Q = 0; FR = 48; NFR = 10
    sTILE = 40; sMODE = 46; sQSRC = 47; sSTAT = 50; sPOLL = 51; sLDS = 52; sROT = 54


class Opt:
    stamps = False
    st_flav = 'sc1'
    ld_flav = 'sc1'
    out_flav = 'sc1'
    x_flav = 'nt'
    f_flav = 'nt'
    cyc = False
    echo = None
    D = 5
    seq = '0 1 2 3 4 5 S+6 7 8 A+9+10 11'
    slack = 1
    passes = 8
    optfill = False
    batch = 1
    occ1 = 64
    occ2 = 80
    occn = 7
    vqd = 2
    chain = True
    alive = True
    vlat = 450
    ta0 = 500
    vlat_s = 900
    n_t0 = 3
    n_t1 = 2
    W = 2
    cap = 6
    cap_tail = 6
    g0 = 1
    ms_bar = 4
    nb_pre = 0
    late_end = 0
    ta_s = 500
    zref = True
    qdiag = 0
    occ_s = 72
    e_span = 26
    pages = 4
    align = True
    fx = 80
    fs = 18
    n_pre = 8


def mix(a, b, lead=0):
    if not b:
        return list(a)
    out, n, m, k = [], len(a), len(b), 0
    for x in range(n):
        out.append(a[x])
        while k < m and (k + 1 - lead) * n <= (x + 1) * (m + 1 - lead):
            out.append(b[k]); k += 1
    return out + b[k:]


def run(p, items):
    for it in items:
        if callable(it):
            it(p)
        elif isinstance(it, tuple):
            p(it[0], tag=it[1])
        else:
            p(it)


class Queue:
    def __init__(self, items=()):
        self.q = list(items)

    def add(self, items):
        self.q += list(items)

    def take(self, n):
        out, self.q = self.q[:n], self.q[n:]
        return out

    def all(self):
        return self.take(len(self.q))


class Stamps:
    def __init__(self, o):
        self.on, self.n, self.names = o.stamps, 0, []
        self.ins = 's_memtime' if o.cyc else 's_memrealtime'

    def __call__(self, p, name):
        if not self.on or self.n >= 10:
            return
        if name != 'start' and self.on is not True and name not in self.on.split():
            return
        r = 80 + 2 * self.n
        p(f'{self.ins} s[{r}:{r+1}]')
        self.names.append(name)
        self.n += 1

    def flush(self, p, base):
        if not self.on:
            return
        p(f'''s_waitcnt lgkmcnt(0)
        s_lshl_b32 s32, s2, 2
        s_add_u32 s32, s32, s3
        s_lshl_b32 s32, s32, 6
        s_add_u32 s32, s32, {base}
        v_mov_b32 v252, s32''')
        for k in range(self.n):
            p(f'v_mov_b32 v253, s{80+2*k}')
            p(f'buffer_store_dword v253, v252, {sWS}, 0 offen offset:{4*k}')
        p('s_waitcnt vmcnt(0)')


def barrier(p, *tags):
    for t in tags:
        p.wait_tag(t)
    p('s_waitcnt lgkmcnt(0)\ns_barrier')


def phi16(dst, row, tmp):
    return f'''v_lshrrev_b32 v{tmp}, 3, v{row}
    v_xor_b32 v{tmp}, v{tmp}, v{row}
    v_and_b32 v{tmp}, 14, v{tmp}
    v_lshlrev_b32 v{dst}, 3, v{tmp}'''


def setup(p, o):
    p(f'''
    s_load_dwordx2 s[4:5], s[0:1], 0
    s_load_dwordx2 s[8:9], s[0:1], 8
    s_load_dwordx2 s[16:17], s[0:1], 16
    s_load_dwordx2 s[20:21], s[0:1], 40
    s_load_dwordx2 s[24:25], s[0:1], 48
    s_load_dwordx2 s[12:13], s[0:1], 56
    s_cmp_ge_u32 s2, {NMAIN+NFOLD}
    s_cbranch_scc1 L_end
    s_getpc_b64 s[28:29]
    L_pc:
    s_mov_b32 s30, L_hot_end-L_pc
    s_mov_b32 s31, 0x00020000
    v_lshrrev_b32 v6, 6, v0
    v_and_b32 v{LANE}, 63, v0
    s_bfe_u32 s32, s2, 0x30003
    s_mul_i32 s32, s32, {28*128}
    v_readfirstlane_b32 s3, v6
    v_mad_u32_u24 v4, v6, 7, v{LANE}
    v_lshl_add_u32 v4, v4, 7, s32
    s_mov_b64 exec, 0x7f
    buffer_load_dword v254, v4, {sCODE}, 0 offen
    s_mov_b64 exec, -1
    v_and_b32 v{II}, 15, v0
    v_bfe_u32 v{GG}, v0, 4, 2
    v_lshlrev_b32 v{L16}, 4, v{LANE}
    s_mov_b32 s14, {(WS_STAMP + (1 << 20)) if o.stamps else WS_END}
    s_mov_b32 s15, 0x00020000
    s_mov_b32 s26, 256
    s_mov_b32 s27, 0x00020000
    s_cmp_ge_u32 s2, {NMAIN}
    s_cbranch_scc1 L_fold
    s_mov_b32 s6, {XBYTES}
    s_mov_b32 s7, 0x00020000
    s_mov_b32 s10, 221184
    s_mov_b32 s11, 0x00020000
    s_mov_b32 s18, 73728
    s_mov_b32 s19, 0x00020000
    s_mov_b32 s22, {XBYTES}
    s_mov_b32 s23, 0x00020000
    ''')


def t_first(p):
    p(f'''
    v_lshrrev_b32 v6, 3, v{LANE}
    v_and_b32 v7, 7, v{LANE}
    s_lshl_b32 s32, s2, 2
    s_add_u32 s32, s32, s3
    s_mul_i32 s33, s32, 384
    s_mov_b32 s34, 279936
    v_mul_lo_u32 v8, v6, s34
    v_lshl_add_u32 v8, v7, 4, v8
    v_add_u32 v8, s33, v8
    s_cmp_lt_u32 s32, {N}
    s_cselect_b32 s34, 7, 0
    v_cmp_gt_u32 vcc, s34, v6
    v_mov_b32 v9, {OOB}
    s_and_b32 s35, s3, 1
    s_lshl_b32 s36, s35, 3
    v_cndmask_b32 v{aXG}, v9, v8, vcc
    s_mul_i32 s38, s3, {8*1152}
    s_mul_i32 s62, s3, {8*768}
    s_mul_i32 s63, s3, 3072
    ''')
    for n in range(3):
        p(f'''
        v_add_u32 v8, {64*n}, v{LANE}
        v_mul_u32_u24 v9, 683, v8
        v_lshrrev_b32 v9, 15, v9
        v_lshl_add_u32 v10, v9, 1, s36
        v_xor_b32 v10, v{LANE}, v10
        v_mul_u32_u24 v9, 384, v9
        v_lshl_add_u32 v9, v10, 4, v9
        v_add_u32 v{aQK+n}, s38, v9
        ''')
    p(f'''
    s_lshr_b32 s32, s2, 3
    s_lshl_b32 s32, s32, 2
    s_add_u32 s32, s32, s3
    s_mul_i32 s33, s32, {26*128}
    v_lshlrev_b32 v16, 7, v{LANE}
    v_add_u32 v16, s33, v16
    v_subrev_u32 v17, 221184, v16
    v_min_u32 v17, {OOB}, v17
    ''')


def t_addr_early():
    c = lines(f'''
    v_lshrrev_b32 v{F}, 3, v{LANE}
    v_and_b32 v{F+1}, 7, v{LANE}
    v_lshlrev_b32 v{F+1}, 4, v{F+1}
    s_lshl_b32 s64, s3, 3
    v_add_u32 v{F+2}, s64, v{F}
    {phi16(F+3, F+2, F+4)}
    v_mul_u32_u24 v{F+2}, 384, v{F+2}
    v_xad_u32 v{F+2}, v{F+1}, v{F+3}, v{F+2}
    v_add_u32 v{wH}, {L_HB}, v{F+2}
    v_add_u32 v{R.RY}, {L_YB}, v{F+2}
    v_lshl_add_u32 v{F+2}, v{F}, 2, s3
    {phi16(F+3, F+2, F+4)}
    v_mul_u32_u24 v{F+2}, 384, v{F+2}
    v_add_u32 v{F+2}, {L_XB}, v{F+2}
    v_xad_u32 v{wX}, v{F+1}, v{F+3}, v{F+2}
    {phi16(F+3, II, F+4)}
    v_mul_u32_u24 v{F+2}, 384, v{II}
    v_lshlrev_b32 v{F+1}, 4, v{GG}
    v_xad_u32 v{F+5}, v{F+1}, v{F+3}, v{F+2}
    v_add_u32 v{rF}, {L_HB}, v{F+5}
    v_xor_b32 v{rF+1}, 64, v{rF}
    v_xor_b32 v{F+4}, 16, v{rF}
    v_add_u32 v{rF+2}, 6144, v{F+4}
    v_xor_b32 v{rF+3}, 64, v{rF+2}
    v_xor_b32 v{F+4}, 8, v{II}
    v_mul_u32_u24 v{F+4}, 384, v{F+4}
    v_add_u32 v{F+4}, {L_HB+6144}, v{F+4}
    v_xor_b32 v{F+6}, 80, v{F+3}
    v_xad_u32 v{rFP}, v{F+1}, v{F+6}, v{F+4}
    v_xor_b32 v{rFP+1}, 64, v{rFP}
    v_add_u32 v{R.RF}, {L_YB}, v{F+5}
    v_xor_b32 v{R.RF+1}, 64, v{R.RF}
    v_xor_b32 v{F+4}, 16, v{R.RF}
    v_add_u32 v{R.RF+2}, 6144, v{F+4}
    v_xor_b32 v{R.RF+3}, 64, v{R.RF+2}
    v_lshrrev_b32 v{F}, 1, v{GG}
    v_lshlrev_b32 v{F}, 4, v{F}
    v_xor_b32 v{F+3}, v{F+3}, v{F}
    v_and_b32 v{F+1}, 1, v{GG}
    v_lshl_add_u32 v{F+2}, v{F+1}, 3, v{F+2}
    s_mul_i32 s64, s3, 96
    ''')
    for mt in range(3):
        c += lines(f'''s_add_u32 s65, s64, {32*mt}
        v_xad_u32 v{F+4}, s65, v{F+3}, v{F+2}
        v_add_u32 v{rX+2*mt}, {L_XB}, v{F+4}
        v_add_u32 v{R.WQ+2*mt}, {L_YB}, v{F+4}
        v_xor_b32 v{F+4}, 16, v{F+4}
        v_add_u32 v{rX+2*mt+1}, {L_XB+6144}, v{F+4}
        v_add_u32 v{R.WQ+2*mt+1}, {L_YB+6144}, v{F+4}''')
    c += lines(f'''
    v_lshrrev_b32 v{F}, 2, v{II}
    v_lshl_add_u32 v{F+2}, v{GG}, 3, v{F}
    v_lshl_add_u32 v{F+3}, v{F+1}, 2, v{F}
    v_lshlrev_b32 v{F+3}, 5, v{F+3}
    v_and_b32 v{F+4}, 3, v{II}
    v_lshlrev_b32 v{F+4}, 3, v{F+4}
    v_mul_u32_u24 v{F+5}, 768, v{F+2}
    v_add_u32 v{F+5}, v{F+5}, v{F+4}
    ''')
    for k in range(6):
        c += lines(f'''s_add_u32 s65, s64, {32*(12*(k//3)+k%3)}
        v_xad_u32 v{tQK+k}, s65, v{F+3}, v{F+5}
        v_add_u32 v{tQK2+k}, 73728, v{tQK+k}''')
    c += lines(f'''
    v_lshrrev_b32 v{F}, 3, v{II}
    v_lshl_add_u32 v{F+3}, v{F+1}, 1, v{F}
    v_lshlrev_b32 v{F+3}, 5, v{F+3}
    v_mul_u32_u24 v{F+5}, 384, v{F+2}
    v_add_u32 v{F+5}, v{F+5}, v{F+4}
    v_add_u32 v{F+5}, 24576, v{F+5}
    ''')
    for mt in range(3):
        c += lines(f'''s_add_u32 s65, s64, {32*mt}
        v_xad_u32 v{tV+mt}, s65, v{F+3}, v{F+5}''')
    c += lines(f'''
    v_lshrrev_b32 v{F+2}, 1, v{GG}
    v_cmp_eq_u32 s[58:59], v{F}, v{F+2}
    v_cmp_eq_u32 s[60:61], 0, v{F+1}
    s_lshl_b32 s65, s3, 10
    s_add_u32 s65, s65, {L_SB}
    v_add_u32 v{wS}, s65, v{L16}
    v_add_u32 v{rS}, {L_SB}, v{L16}
    s_and_b32 s65, s3, 1
    s_lshl_b32 s65, s65, 2
    s_add_u32 s66, s38, 768
    ''')
    for n in range(3):
        c += lines(f'''
        v_add_u32 v{F}, {64*n}, v{LANE}
        v_mul_u32_u24 v{F}, 683, v{F}
        v_lshrrev_b32 v{F}, 14, v{F}
        v_and_b32 v{F+1}, 2, v{F}
        v_xor_b32 v{F+1}, s65, v{F+1}
        v_xor_b32 v{F+1}, v{LANE}, v{F+1}
        v_lshl_add_u32 v{aO+n}, v{F+1}, 4, s63
        v_mul_u32_u24 v{F}, 768, v{F}
        v_lshl_add_u32 v{F}, v{F+1}, 4, v{F}
        v_add_u32 v{aV+n}, s66, v{F}
        ''')
    for nt in range(2):
        for b in (QBF, KBF):
            c.append(f'v_mov_b64 {vr(b+8*nt+6,2)}, 0')
    return c


def t_addr_wa():
    c = lines(f'''
    v_and_b32 v{G}, 7, v{II}
    v_lshlrev_b32 v{G}, 2, v{G}
    v_lshrrev_b32 v{G+1}, 3, v{II}
    v_add_u32 v{G}, v{G}, v{G+1}
    {phi16(G+2, G, G+1)}
    v_lshrrev_b32 v{G+1}, 1, v{GG}
    v_lshlrev_b32 v{G+1}, 4, v{G+1}
    v_xor_b32 v{G+2}, v{G+2}, v{G+1}
    v_mul_u32_u24 v{G}, 384, v{G}
    v_and_b32 v{G+1}, 1, v{GG}
    v_lshl_add_u32 v{G}, v{G+1}, 3, v{G}
    v_add_u32 v{G}, {L_HB}, v{G}
    s_mul_i32 s70, s3, 96
    ''')
    for mt in range(3):
        c += lines(f'''s_add_u32 s71, s70, {32*mt}
        v_xad_u32 v{wA+2*mt}, s71, v{G+2}, v{G}
        v_xor_b32 v{G+1}, 16, v{wA+2*mt}
        v_add_u32 v{wA+2*mt+1}, 768, v{G+1}''')
    return c


def t_addr_st():
    return lines(f'''
    s_lshl_b32 s70, s3, 2
    s_add_u32 s70, s70, {L_STP}
    v_add_u32 v{wST}, s70, v{L16}
    v_lshlrev_b32 v{G}, 4, v{II}
    v_add_u32 v{rST}, {L_STP}, v{G}''')


def t_addr_out():
    return lines(f'''
    v_lshrrev_b32 v{G}, 2, v{II}
    v_and_b32 v{G+1}, 1, v{GG}
    v_lshl_add_u32 v{G}, v{G+1}, 2, v{G}
    s_mov_b32 s70, {FRAME}
    v_mul_lo_u32 v{G+1}, v{G}, s70
    v_cmp_gt_u32 s[76:77], 7, v{G}
    s_bfe_u32 s70, s2, 0x10001
    v_lshrrev_b32 v{G+2}, 1, v{GG}
    v_xor_b32 v{G+2}, s70, v{G+2}
    v_lshl_add_u32 v{G+1}, v{G+2}, 6, v{G+1}
    v_and_b32 v{G+2}, 3, v{II}
    v_lshl_add_u32 v{G+1}, v{G+2}, 4, v{G+1}
    v_mov_b32 v{G+2}, {OOB}
    v_cndmask_b32 v{gH}, v{G+2}, v{G+1}, s[76:77]
    v_cmp_gt_u32 s[76:77], 32, v0
    s_lshl_b32 s70, s2, 8
    s_add_u32 s70, s70, {WS_ST}
    v_lshl_add_u32 v{G+1}, v{LANE}, 3, s70
    v_cndmask_b32 v{gST}, v{G+2}, v{G+1}, s[76:77]
    s_lshr_b32 s70, s2, 3
    s_mul_i32 s70, s70, {TILE}
    s_add_u32 s70, s70, s63
    s_and_b32 s71, s2, 7
    s_and_b32 s74, s3, 1
    s_xor_b32 s71, s71, s74
    s_lshl_b32 s71, s71, 7
    s_xor_b32 s74, s71, 128
    s_add_u32 s72, s71, s70
    s_add_u32 s73, s74, s70
    ''')


def s_addr():
    c = lines(f'''
    s_and_b32 s64, s2, 7
    s_mul_i32 s65, s64, {FRAME}
    s_lshr_b32 s66, s2, 3
    s_add_u32 s67, s66, s3
    s_mul_i32 s{R.sLDS}, s3, {3*TILE}
    s_mul_i32 s68, s66, {TILE}
    s_add_u32 s68, s68, s65
    s_add_u32 s{R.sQSRC}, s68, s63
    s_lshl_b32 s68, s66, 11
    s_lshl_b32 s69, s64, 5
    s_add_u32 s68, s68, s69
    s_add_u32 s{R.sSTAT}, s68, {WS_ST}
    s_mul_i32 s68, s64, 3072
    s_add_u32 s{R.sPOLL}, s68, {WS_FL}
    s_add_u32 s{R.sMODE}, s65, {22*TILE}
    ''')
    c.append(f's_cmp_eq_u32 s66, 22\ns_cselect_b32 s75, {L_YB}, 0\ns_cselect_b32 s68, 1, 0')
    c.append(f's_or_b32 s39, s68, s3')
    for i in range(6):
        c.append(f's_cmp_ge_u32 s67, 22\ns_cselect_b32 s68, 22, 0')
        c += lines(f'''s_sub_u32 s67, s67, s68
        s_mul_i32 s68, s67, {TILE}
        s_add_u32 s{R.sTILE+i}, s68, s65
        s_add_u32 s67, s67, 4''')
    c.append(f's_cmp_ge_u32 s3, 2\ns_cselect_b32 s{R.sTILE+5}, s{R.sMODE}, s{R.sTILE+5}\ns_cselect_b32 s49, 0xff800000, 0')
    c.append(f's_cmp_eq_u32 s3, 3\ns_cselect_b32 s48, 0xff800000, 0\ns_cselect_b32 s68, {OOB}, 0')
    c.append(f'v_or_b32 v{R.DMA5}, s68, v{L16}')
    for G in range(4):
        c += lines(f'''s_add_u32 s68, s3, {G}
        s_and_b32 s68, s68, 3
        s_mul_i32 s{R.sROT+G}, s68, 3072''')
    a, b, d, e, f, g, h = F, F + 1, F + 2, F + 3, F + 4, F + 5, F + 6
    c += lines(f'''
    s_and_b32 s68, s3, 1
    s_lshl_b32 s68, s68, 7
    v_and_b32 v{a}, 3, v{LANE}
    v_bfe_u32 v{b}, v{LANE}, 2, 3
    v_lshrrev_b32 v{d}, 5, v{LANE}
    v_bfe_u32 v{e}, v{LANE}, 3, 1
    v_xor_b32 v{e}, v{e}, v{d}
    v_lshlrev_b32 v{f}, 4, v{a}
    v_lshl_add_u32 v{f}, v{e}, 6, v{f}
    v_lshl_add_u32 v{f}, v{b}, 7, v{f}
    v_xor_b32 v{f}, s68, v{f}
    v_add_u32 v{R.K[0]}, s{R.sLDS}, v{f}
    v_xor_b32 v{R.K[1]}, 128, v{R.K[0]}
    v_bfe_u32 v{a}, v{LANE}, 4, 1
    v_xor_b32 v{b}, v{d}, v{a}
    v_bfe_u32 v{e}, v{LANE}, 1, 1
    v_bfe_u32 v{f}, v{LANE}, 2, 2
    v_and_b32 v{g}, 1, v{LANE}
    v_lshlrev_b32 v{g}, 3, v{g}
    v_lshl_add_u32 v{g}, v{f}, 4, v{g}
    v_lshl_add_u32 v{g}, v{e}, 6, v{g}
    v_lshl_add_u32 v{g}, v{b}, 7, v{g}
    v_lshl_add_u32 v{g}, v{a}, 10, v{g}
    v_xor_b32 v{g}, s68, v{g}
    v_add_u32 v{R.V[0]}, s{R.sLDS}, v{g}
    v_xor_b32 v{R.V[1]}, 64, v{R.V[0]}
    v_lshrrev_b32 v{b}, 2, v{II}
    v_lshrrev_b32 v{e}, 3, v{II}
    v_and_b32 v{f}, 3, v{II}
    v_lshlrev_b32 v{g}, 3, v{f}
    v_lshl_add_u32 v{R.GSTAT}, v{b}, 8, v{g}
    v_lshlrev_b32 v{f}, 4, v{f}
    v_xor_b32 v{g}, v{d}, v{e}
    v_lshl_add_u32 v{g}, v{g}, 6, v{f}
    v_lshl_add_u32 v{g}, v{a}, 3, v{g}
    v_lshl_add_u32 v{g}, v{b}, 7, v{g}
    v_xor_b32 v{g}, s68, v{g}
    s_add_u32 s69, s63, s75
    v_add_u32 v{R.RES}, s69, v{g}
    v_xor_b32 v{R.RES+1}, 128, v{R.RES}
    v_and_b32 v{a}, 31, v{LANE}
    {phi16(b, a, e)}
    v_mul_u32_u24 v{a}, 384, v{a}
    v_add_u32 v{a}, {L_QB}, v{a}
    v_bfe_u32 v{e}, v{LANE}, 1, 2
    v_bfe_u32 v{f}, v{LANE}, 4, 1
    v_lshl_add_u32 v{e}, v{f}, 2, v{e}
    v_xor_b32 v{e}, v{e}, v{d}
    v_lshlrev_b32 v{e}, 4, v{e}
    ''')
    for q in range(12):
        c.append(f's_lshr_b32 s68, s{R.sROT+q//3}, 5' if q % 3 == 0 else 's_add_u32 s68, s68, 32')
        c.append(f'v_xad_u32 v{R.RQ+q}, s68, v{e}, v{a}')
    c += [f'v_lshl_add_u32 v{a}, v{d}, 3, v{a}', 's_mul_i32 s69, s3, 96']
    for gi in range(6):
        c += lines(f'''s_add_u32 s68, s69, {16*gi}
        v_xad_u32 v{R.WOB+gi}, s68, v{b}, v{a}''')
    c += lines(f'''v_add_u32 v{R.WO}, s{R.sLDS}, v{L16}
    v_lshlrev_b32 v{a}, 3, v{LANE}
    s_lshl_b32 s68, s3, 9
    s_add_u32 s68, s68, {L_MS}
    v_add_u32 v{R.WMS}, s68, v{a}''')
    for k in range(1, 4):
        c += lines(f'''s_sub_u32 s68, s3, {k}
        s_and_b32 s68, s68, 3
        s_mul_i32 s69, s68, {3*TILE}
        v_add_u32 v{R.RO+k-1}, s69, v{L16}
        s_lshl_b32 s68, s68, 9
        s_add_u32 s68, s68, {L_MS}
        v_add_u32 v{R.RMS+k-1}, s68, v{a}''')
    c += lines(f'''
    v_lshrrev_b32 v{a}, 3, v{LANE}
    s_lshl_b32 s68, s66, 5
    s_lshl_b32 s69, s3, 3
    s_add_u32 s68, s68, s69
    v_add_u32 v{a}, s68, v{a}
    v_mul_u32_u24 v{b}, 384, v{a}
    s_movk_i32 s69, {N}
    v_cmp_gt_u32 s[76:77], s69, v{a}
    v_and_b32 v{a}, 7, v{LANE}
    v_lshl_add_u32 v{b}, v{a}, 4, v{b}
    s_mul_i32 s68, s64, 279936
    v_add_u32 v{b}, s68, v{b}
    v_mov_b32 v{a}, {OOB}
    v_cndmask_b32 v{R.GOUT}, v{a}, v{b}, s[76:77]
    ''')
    return c


def s_addr_late():
    a, b, d, e, f = G, G + 1, G + 2, G + 3, G + 4
    c = lines(f'''
    v_bfe_u32 v{a}, v{II}, 2, 1
    v_bfe_u32 v{b}, v{II}, 3, 1
    v_xor_b32 v{a}, v{a}, v{b}
    v_lshl_add_u32 v{d}, v{a}, 2, v{b}
    v_lshrrev_b32 v{e}, 1, v{GG}
    v_xor_b32 v{f}, v{d}, v{e}
    v_lshlrev_b32 v{f}, 7, v{f}
    v_lshl_add_u32 v{f}, v{e}, 10, v{f}
    v_and_b32 v{e}, 1, v{GG}
    v_lshl_add_u32 v{f}, v{e}, 6, v{f}
    v_and_b32 v{e}, 3, v{II}
    v_lshl_add_u32 v{f}, v{e}, 4, v{f}
    v_add_u32 v{R.HQ}, s75, v{f}
    v_xor_b32 v{f}, 64, v{R.HQ}
    v_add_u32 v{R.WQP+6}, 256, v{f}
    v_lshl_add_u32 v{d}, v{d}, 2, v{e}
    v_bfe_u32 v{e}, v{d}, 1, 2
    v_lshl_add_u32 v{e}, v{a}, 2, v{e}
    v_lshrrev_b32 v{a}, 1, v{GG}
    v_xor_b32 v{e}, v{e}, v{a}
    v_lshlrev_b32 v{e}, 4, v{e}
    v_mul_u32_u24 v{d}, 384, v{d}
    v_and_b32 v{a}, 1, v{GG}
    v_lshl_add_u32 v{d}, v{a}, 3, v{d}
    v_add_u32 v{d}, {L_QB}, v{d}
    s_mul_i32 s70, s3, 96
    ''')
    for mt in range(3):
        c += lines(f'''s_add_u32 s71, s70, {32*mt}
        v_xad_u32 v{R.WQP+mt}, s71, v{e}, v{d}''')
    return c


def dma_item(n):
    slot = SLOT[n]
    out = []
    for grp in range(2):
        if n < 6:
            m0, so, voff, srd = f's_add_u32 m0, s62, {slot + grp*3072}', n * 32 * 1152 + grp * 4 * 1152, aQK, sW
        elif n < 9:
            m0, so, voff, srd = f's_add_u32 m0, s63, {slot + grp*12288}', (2 * (n - 6) + grp) * 32 * 1152, aV, sW
        else:
            m0, so, voff, srd = f's_add_u32 m0, s63, {slot + grp*12288}', (2 * (n - 9) + grp) * 12288, aO, sWO
        out += [m0, f's_mov_b32 s53, {so}']
        out += [(f'buffer_load_dwordx4 v{voff+k}, {srd}, s53 offen offset:{1024*k} lds', f'it{n}') for k in range(3)]
    return out


def stage(n, mtmajor=False):
    off = SLOT[n] - (73728 if n in (3, 4, 9) else 24576 if n in (6, 7, 8) else 0)
    wf = WF[n & 1]
    rd, mf = [], []
    if n < 6:
        for k in range(6):
            mat, mt = divmod(k, 3)
            f = wf + 4 * k
            rd += [f'ds_read_b64_tr_b16 {ar(f+2*u,2)}, v{(tQK2 if n in (3, 4) else tQK)+k} offset:{off + 3072*u}' for u in range(2)]
            for nt in range(2):
                acc = (QA, KA)[mat] + 8 * mt + 4 * nt
                h = HP + 4 * n if (mat == 1 and nt == 1) else HF + 24 * nt + 4 * n
                mf.append(f'v_mfma_f32_16x16x32_bf16 {vr(acc,4)}, {ar(f,4)}, {ar(h,4)}, {vr(acc,4) if n else 0}')
        return rd, mf
    order = [(half, mt) for mt in range(3) for half in range(2)] if mtmajor else [(half, mt) for half in range(2) for mt in range(3)]
    for k, (half, mt) in enumerate(order):
        ks = 2 * ((n - 6) % 3) + half
        f = wf + 4 * k
        rd += [f'ds_read_b64_tr_b16 {ar(f+2*u,2)}, v{tV+mt} offset:{off + 12288*half + 1536*u}' for u in range(2)]
        for nt in range(2):
            if n < 9:
                acc = VA + 8 * mt + 4 * nt
                h = HP + 4 * ks if nt else HF + 4 * ks
                mf.append(f'v_mfma_f32_16x16x32_bf16 {vr(acc,4)}, {ar(h,4)}, {ar(f,4)}, {vr(acc,4) if ks else 0}')
            else:
                acc = QA + 8 * mt + 4 * nt
                mf.append(f'v_mfma_f32_16x16x32_bf16 {vr(acc,4)}, {ar(f,4)}, {ar(HF+24*nt+4*ks,4)}, {vr(acc,4)}')
    return rd, mf


def frag_reads(base, ks, off=0):
    return [f'ds_read_b128 {ar(HF+24*nt+4*ks,4)}, v{base+2*nt+(ks&1)} offset:{off+128*(ks>>1)}' for nt in range(2)]


def ln1_code():
    X, U, H = 4, QA, KA
    c = ['v_mov_b32 v20, 0x3f803f80']
    for k in range(12):
        c.append(f'v_dot2_f32_bf16 v16, v{X+k}, v20, {"v16" if k else "0"}')
        c.append(f'v_dot2_f32_bf16 v17, v{X+k}, v{X+k}, {"v17" if k else "0"}')
        if k % 4 == 3:
            c.append(f'ds_write_b128 v{wX}, {vr(X+k-3,4)} offset:{128*(k//4)}')
    un = []
    for k in range(12):
        un += [f'v_lshlrev_b32 v{U+2*k}, 16, v{X+k}', f'v_and_b32 v{U+2*k+1}, 0xffff0000, v{X+k}']
    q = Queue(un)
    c += q.take(3)
    for d in ('quad_perm:[1,0,3,2]', 'quad_perm:[2,3,0,1]', 'row_half_mirror'):
        c.append(f'v_add_f32_dpp v16, v16, v16 {d} row_mask:0xf bank_mask:0xf')
        c.append(f'v_add_f32_dpp v17, v17, v17 {d} row_mask:0xf bank_mask:0xf')
        c += q.take(1)
    c += [f'v_mul_f32 v16, {fbits(1/192)}, v16',
          f'v_mul_f32 v17, {fbits(1/192)}, v17',
          'v_fma_f32 v17, -v16, v16, v17',
          'v_max_f32 v17, 0, v17',
          f'v_add_f32 v17, {fbits(1e-5)}, v17',
          'v_rsq_f32 v18, v17']
    c += q.take(1) + ['v_mul_f32 v19, v16, v18'] + q.all()
    for k in range(12):
        c.append(f'v_pk_fma_f32 {vr(U+2*k,2)}, {vr(U+2*k,2)}, v[18:19], v[18:19] op_sel:[0,0,1] op_sel_hi:[1,0,1] neg_lo:[0,0,1] neg_hi:[0,0,1]')
        if k:
            c.append(f'v_cvt_pk_bf16_f32 v{H+k-1}, v{U+2*k-2}, v{U+2*k-1}')
        if k % 4 == 0 and k:
            c.append(f'ds_write_b128 v{wH}, {vr(H+k-4,4)} offset:{128*(k//4-1)}')
    c.append(f'v_cvt_pk_bf16_f32 v{H+11}, v{U+22}, v{U+23}')
    c.append(f'ds_write_b128 v{wH}, {vr(H+8,4)} offset:256')
    return c


def cvt4(d, a):
    return [f'v_cvt_pk_bf16_f32 v{d}, v{a}, v{a+1}', f'v_cvt_pk_bf16_f32 v{d+1}, v{a+2}, v{a+3}']


PT = 18


def t_softmax_code():
    b = TM
    rd = [f'ds_read_b128 {vr(b+4*w,4)}, v{rS} offset:{1024*w}' for w in range(4)]
    c = []
    for j in range(4):
        c.append(f'v_add_f32 v{b+j}, v{b+j}, v{b+4+j}')
    for j in range(4):
        c.append(f'v_add_f32 v{b+8+j}, v{b+8+j}, v{b+12+j}')
    for j in (3, 0, 1, 2):
        c.append(f'v_add_f32 v{b+j}, v{b+j}, v{b+8+j}')
    m, t, l = b + 4, b + 5, b + 6
    c += [f'v_cndmask_b32 v{b+3}, v22, v{b+3}, s[60:61]',
          f'v_max3_f32 v{m}, v{b}, v{b+1}, v{b+2}',
          f'v_max_f32 v{m}, v{m}, v{b+3}',
          f'v_mov_b32 v{t}, v{m}',
          f'v_permlane16_swap_b32 v{t}, v{m}',
          f'v_max_f32 v{m}, v{m}, v{t}',
          f'v_mul_f32 v{m}, s32, v{m}']
    c += [f'v_fma_f32 v{b+j}, v{b+j}, s32, -v{m}' for j in range(4)]
    c += [f'v_exp_f32 v{b+j}, v{b+j}' for j in range(4)]
    c += [f'v_add_f32 v{l}, v{b}, v{b+1}',
          f'v_add_f32 v{t}, v{b+2}, v{b+3}',
          f'v_add_f32 v{l}, v{l}, v{t}',
          f'v_mov_b32 v{t}, v{l}',
          f'v_permlane16_swap_b32 v{t}, v{l}',
          f'v_add_f32 v{l}, v{l}, v{t}',
          f'v_rcp_f32 v{l}, v{l}']
    c += [f'v_mul_f32 v{b+j}, v{b+j}, v{l}' for j in range(4)]
    c += cvt4(16, b)
    c += [f'v_cndmask_b32 v{PT}, 0, v16, s[58:59]', f'v_cndmask_b32 v{PT+1}, 0, v17, s[58:59]',
          f'v_cndmask_b32 v{PT+2}, v16, 0, s[58:59]', f'v_cndmask_b32 v{PT+3}, v17, 0, s[58:59]']
    return rd, c


def resid_code():
    rd = [f'ds_read_b64 {vr(4+4*mt+2*nt,2)}, v{rX+2*mt+nt}' for mt in range(3) for nt in range(2)]
    c = []
    for mt in range(3):
        for nt in range(2):
            a, s = QA + 8 * mt + 4 * nt, 4 + 4 * mt + 2 * nt
            c += [f'v_lshlrev_b32 v{a}, 16, v{s}', f'v_and_b32 v{a+1}, 0xffff0000, v{s}',
                  f'v_lshlrev_b32 v{a+2}, 16, v{s+1}', f'v_and_b32 v{a+3}, 0xffff0000, v{s+1}']
    return rd, c


def ln2_part(mt):
    c = []
    for j in range(4):
        for nt in range(2):
            a = QA + 8 * mt + 4 * nt + j
            if mt == 0 and j == 0:
                c.append(f'v_mul_f32 v{18+nt}, v{a}, v{a}')
            else:
                c.append(f'v_add_f32 v{16+nt}, v{a-1 if (mt == 0 and j == 1) else 16+nt}, v{a}')
                c.append(f'v_fmac_f32 v{18+nt}, v{a}, v{a}')
    return c


def ln2_b(o):
    b = TM
    c = []
    for k in range(4):
        c.append(f'v_pk_add_f32 {vr(b+4*k,2)}, {vr(b+4*k,2)}, {vr(b+4*k+2,2)}')
    for k in range(4):
        c.append(f'v_add_f32 v{16+k}, v{b+4*k}, v{b+4*k+1}')
    c += [f's_mov_b32 s32, {fbits(1/192)}', f's_mov_b32 s34, {fbits(1e-5)}',
          'v_pk_mul_f32 v[16:17], v[16:17], s[32:33] op_sel_hi:[1,0]',
          'v_pk_mul_f32 v[18:19], v[18:19], s[32:33] op_sel_hi:[1,0]',
          'v_pk_fma_f32 v[18:19], v[16:17], v[16:17], v[18:19] neg_lo:[1,0,0] neg_hi:[1,0,0]',
          'v_max_f32 v18, 0, v18', 'v_max_f32 v19, 0, v19',
          'v_pk_add_f32 v[18:19], v[18:19], s[34:35] op_sel_hi:[1,0]',
          'v_rsq_f32 v20, v18', 'v_rsq_f32 v21, v19',
          'v_cndmask_b32 v24, v17, v16, s[60:61]',
          'v_pk_mul_f32 v[22:23], v[16:17], v[20:21]',
          'v_pk_mul_f32 v[18:19], v[18:19], v[20:21]']
    for mt in range(3):
        d = KA + 4 * mt
        for nt in range(2):
            a = QA + 8 * mt + 4 * nt
            for h in range(2):
                c.append(f'v_pk_fma_f32 {vr(a+2*h,2)}, {vr(a+2*h,2)}, v[20:21], v[22:23] op_sel:[0,{nt},{nt}] op_sel_hi:[1,{nt},{nt}] neg_lo:[0,0,1] neg_hi:[0,0,1]')
        for nt in range(2):
            c += cvt4(d + 2 * nt, QA + 8 * mt + 4 * nt)
        if mt == 0:
            c.append('v_cndmask_b32 v25, v19, v18, s[60:61]')
        c += [f'v_permlane16_swap_b32 v{d}, v{d+2}', f'v_permlane16_swap_b32 v{d+1}, v{d+3}']
        c.append((f'buffer_store_dwordx4 {vr(d,4)}, v{gH}, {sWS}, s{73 if mt == 1 else 72} offen offset:{1024*mt} {o.st_flav}', 'h2'))
    c.append((f'buffer_store_dwordx2 v[24:25], v{gST}, {sWS}, 0 offen {o.st_flav}', 'h2'))
    return c


def ab_loads(o):
    out = []
    for (reg, base) in ((AFR, WS_AF), (BFR, WS_BF)):
        for k in range(18):
            ld = f'buffer_load_dwordx4 {ar(reg+4*k,4)}, v{L16}, {sWS}, s79 offen offset:{1024*(k%4)} {o.ld_flav}'
            if k % 4 == 0:
                out.append(lambda p, ld=ld, x=base + 1024 * k: (p(f's_add_u32 s79, s78, {x}'), p(ld)))
            else:
                out.append(ld)
    return out


def phase_t(p, o, st):
    t_first(p)
    for b in range(3):
        p(f'buffer_load_dwordx4 {vr(4+4*b,4)}, v{aXG}, {sX}, 0 offen offset:{128*b} {o.x_flav}')
    run(p, dma_item(0))
    p(f'''s_mov_b64 exec, 0x3ffffff
    buffer_load_dword v252, v16, {sW}, 0 offen
    buffer_load_dword v253, v17, {sWO}, 0 offen
    s_mov_b64 exec, -1''')
    st(p, 'karg')
    run(p, t_addr_early())
    page_visits(p, o)
    fq = Queue(s_addr())
    run(p, fq.take(o.fx))
    st(p, 'addr')
    p('@touch v15')
    st(p, 'x')
    r = Region()
    r.chain, r.alive, r.stamp, r.name = o.chain, o.alive, st, 'T'
    r.batch = o.batch
    seq = [x.split('+') for x in o.seq.split()]
    at = {k: b for b, x in enumerate(seq) for k in x}
    land = [at[str(n)] for n in range(12)]
    bS, bA = at['S'], at['A']
    for b in range(len(seq)):
        r.barrier(*(['it0'] if b == land[0] else []))
    free = lambda n: land[n] + o.slack
    dma = lambda n: r.run(dma_item(n), lo=(-1 if n < 5 else free(n - 5)), hi=land[n], occ=(o.occ1 if n < o.occn else o.occ2))
    r.run(ln1_code(), lo=-1, hi=0)
    for n in range(1, 5):
        dma(n)
    hp = lambda ks: [f'ds_read_b128 {ar(HP+4*ks,4)}, v{rFP+(ks&1)} offset:{128*(ks>>1)}']
    xr, xc = resid_code()
    cq = [x for mt in range(3) for nt in range(2) for x in cvt4(QBF + 8 * nt + 2 * mt, QA + 8 * mt + 4 * nt)]
    ck = [x for mt in range(3) for nt in range(2) for x in cvt4(KBF + 8 * nt + 2 * mt, KA + 8 * mt + 4 * nt)]
    rs, cs = t_softmax_code()
    for n in range(12):
        if n == 0:
            for ks in range(6):
                r.run(frag_reads(rF, ks) + hp(ks), lo=0, hi=bS)
            r.run(xr, lo=0, hi=-1)
        if n == 6:
            r.run(cq + ck)
            for half in range(2):
                for nt in range(2):
                    r.add(f'v_mfma_f32_16x16x32_bf16 {vr(TM+4*nt,4)}, {vr(KBF+8*nt+4*half,4)}, {vr(QBF+8*nt+4*half,4)}, {vr(TM+4*nt,4) if half else 0}')
            r.run([f'v_cndmask_b32 v{TM+8+j}, v{TM+4+j}, v{TM+j}, s[58:59]' for j in range(4)])
            r.add(f'ds_write_b128 v{wS}, {vr(TM+8,4)}', lo=0, hi=bS)
            r.run(t_addr_wa() + xc)
            r.run(rs, lo=bS, hi=-1)
            r.run(['v_mov_b32 v22, 0xff800000', f's_mov_b32 s32, {fbits(SCALE_LOG2E)}'] + cs + t_addr_st() + t_addr_out())
        if n == 9:
            for mt in range(3):
                for nt in range(2):
                    r.run(cvt4(QBF + 4 * mt + 2 * nt, VA + 8 * mt + 4 * nt))
                    r.add(f'v_mfma_f32_16x16x16_bf16 {vr(AT+8*mt+4*nt,4)}, {vr(QBF+4*mt+2*nt,2)}, {vr(PT+2*nt,2)}, 0')
                    r.run(cvt4(KBF + 4 * mt + 2 * nt, AT + 8 * mt + 4 * nt))
                    r.add(f'ds_write_b64 v{wA+2*mt+nt}, {vr(KBF+4*mt+2*nt,2)}', lo=bS, hi=bA)
            r.run([f'v_add_u32 v{tV+mt}, 49152, v{tV+mt}' for mt in range(3)])
            for ks in range(6):
                r.run(frag_reads(rF, ks), lo=bA, hi=-1)
        if n == 10:
            r.run([f'v_subrev_u32 v{tV+mt}, 73728, v{tV+mt}' for mt in range(3)])
        rd, mf = stage(n, n in (8, 11))
        r.run(rd, lo=land[n], hi=(free(n) if n + 5 < 12 else -1))
        r.run(mf)
        if n + 5 < 12:
            dma(n + 5)
    r.add(f'''v_cmp_eq_u32 vcc, 0, v0
    v_mov_b32 v{G+3}, {OOB}
    s_nop 0
    v_cndmask_b32 v{G+4}, v{G+3}, v0, vcc''')
    r.add(f'buffer_load_dword v{vFC}, v{G+4}, {sDBG}, 0 offen sc1', lo=bA)
    r.run(ln2_part(0) + ln2_part(1) + ln2_part(2))
    r.run(['v_permlane16_swap_b32 v16, v17', 'v_permlane16_swap_b32 v18, v19', 'v_add_f32 v16, v16, v17', 'v_add_f32 v18, v18, v19',
           'v_permlane32_swap_b32 v16, v18', 'v_add_f32 v16, v16, v18'])
    r.add(f'ds_write_b32 v{wST}, v16', lo=0)
    r.barrier()
    r.run([f'ds_read_b128 {vr(TM+4*k,4)}, v{rST} offset:{256*k}' for k in range(4)], hi=-1)
    r.run(ln2_b(o))
    if o.optfill:
        r.run(fq.all(), opt=True)
    left = r.schedule(p, passes=o.passes, t0=2240, vlat=o.vlat, ta0=2240+o.ta0, vqd=o.vqd)
    st(p, 'h2st')
    return Queue(left + fq.all())


def page_visits(p, o):
    if not o.pages:
        return
    p('s_mov_b64 exec, 0')
    for k in range(o.pages):
        lab = p.label('L_nv')
        p(f's_cmp_lg_u32 s3, {k % 4}\ns_cbranch_scc1 {lab}\ns_branch L_page{k}\nL_pageret{k}:\n{lab}:')
    p('s_mov_b64 exec, -1')


def grid_sync(p, o, st, fq):
    lp, dn = p.label('L_fc'), p.label('L_fcd')
    p(f'''v_cmp_eq_u32 s[34:35], 0, v0
    v_cmp_ne_u32 vcc, {NFOLD}, v{vFC}
    s_mov_b32 s32, 0
    s_and_b64 vcc, vcc, s[34:35]
    s_cbranch_vccz {dn}
    {lp}:''')
    p(f'buffer_load_dword v{vFC}, off, {sDBG}, 0 sc1', cond=True)
    p(f'''s_add_u32 s32, s32, 1
    s_cmp_gt_u32 s32, {SPIN_MAX}
    s_cbranch_scc1 {dn}
    s_waitcnt vmcnt(0)
    v_cmp_ne_u32 vcc, {NFOLD}, v{vFC}
    s_cbranch_vccnz {lp}
    {dn}:
    s_barrier''')
    st(p, 'fc')
    lds = ab_loads(o)[:18 + o.nb_pre]
    pre = lines(f'''s_lshl_b32 s32, s2, 4
    s_add_u32 s32, s32, {WS_FL}
    v_mul_u32_u24 v20, 3072, v0
    v_add_u32 v20, s32, v20
    v_cmp_gt_u32 vcc, 8, v0
    v_mov_b32 v21, {OOB}
    v_min_u32 v22, 45, v{LANE}
    v_cndmask_b32 v20, v21, v20, vcc
    v_mov_b32 v21, 1
    s_mul_i32 s32, s3, 46
    v_add_u32 v22, s32, v22
    v_lshlrev_b32 v22, 4, v22''')
    p(f's_mul_i32 s78, s3, {18*1024}')
    left = pre + fq.all() + s_addr_late()
    nb = (o.n_pre + 2) // 3
    per = (len(left) + nb - 1) // nb
    for k in range(0, o.n_pre, 3):
        run(p, lds[k:min(k + 3, o.n_pre)] + left[:per])
        left = left[per:]
    st(p, 'ld12')
    barrier(p, 'h2')
    p(f'buffer_store_dword v21, v20, {sWS}, 0 offen sc1')
    st(p, 'flag')
    p(f'''s_and_b32 s32, s2, 7
    s_cmp_eq_u32 s32, 7
    s_cbranch_scc1 L_fin''')
    run(p, lds[o.n_pre:])
    st(p, 'ld36')
    lp, dn = p.label('L_poll'), p.label('L_polld')
    p(f'''s_mov_b32 s32, 0
    {lp}:
    buffer_load_dword v21, v22, {sWS}, s{R.sPOLL} offen sc1
    s_add_u32 s32, s32, 1
    s_cmp_gt_u32 s32, {SPIN_MAX}
    s_cbranch_scc1 {dn}
    s_waitcnt vmcnt(0)
    v_cmp_ne_u32 vcc, 1, v21
    s_cbranch_vccnz {lp}
    {dn}:
    s_waitcnt vmcnt(0)
    s_barrier''')
    st(p, 'go')


def fold(p, o):
    fs = Stamps(o)
    fs.on = bool(o.stamps)
    fs.n = 1
    sFW, sFO = 's[64:67]', 's[68:71]'
    lb, lj, lb2, lj2 = p.label('L_fb'), p.label('L_fj'), p.label('L_fb'), p.label('L_fj')
    A0, B0, ACC = 64, 112, 24
    p(f'''
    s_load_dwordx2 s[64:65], s[0:1], 24
    s_load_dwordx2 s[68:69], s[0:1], 32
    s_mov_b32 s66, 221184
    s_mov_b32 s67, 0x00020000
    s_mov_b32 s70, 73728
    s_mov_b32 s71, 0x00020000
    s_sub_u32 s32, s2, {NMAIN}
    s_cmp_ge_u32 s32, 18
    s_cselect_b32 s34, 18, 0
    s_cselect_b32 s35, 768, 0
    s_sub_u32 s33, s32, s34
    s_mul_i32 s36, s33, 86
    s_lshr_b32 s36, s36, 8
    s_mul_i32 s37, s36, 3
    s_sub_u32 s37, s33, s37
    s_lshl_b32 s38, s3, 3
    s_mul_i32 s63, s3, 3072
    ''')
    for n in range(3):
        p(f'''v_add_u32 v8, {64*n}, v{LANE}
        v_mul_u32_u24 v9, 683, v8
        v_lshrrev_b32 v9, 14, v9
        v_add_u32 v10, s38, v9
        {phi16(11, 10, 12)}
        v_xor_b32 v11, v{L16}, v11
        v_mul_u32_u24 v9, 768, v9
        v_add_u32 v9, v9, v11
        s_mul_i32 s39, s38, 1152
        v_add_u32 v{16+n}, s39, v9''')
    p(f'''
    v_lshrrev_b32 v8, 3, v{LANE}
    v_mul_u32_u24 v8, 384, v8
    v_and_b32 v9, 7, v{LANE}
    v_bfe_u32 v10, v{LANE}, 4, 1
    v_lshlrev_b32 v10, 1, v10
    v_xor_b32 v9, v9, v10
    v_lshl_add_u32 v19, v9, 4, v8
    v_xor_b32 v20, 64, v19
    s_mul_i32 s39, s36, {32*1152}
    s_add_u32 s39, s39, s35
    s_mov_b32 m0, s63
    s_waitcnt lgkmcnt(0)
    ''')
    fs(p, 'karg')
    for n in range(3):
        p(f'buffer_load_dwordx4 v{16+n}, {sFW}, s39 offen offset:{1024*n} {o.f_flav} lds')
    p(f'''s_cmp_ge_u32 s32, 18
    s_cbranch_scc1 {lb}
    s_mul_i32 s39, s37, {64*1152}
    s_add_u32 s39, s39, 384''')
    for blk in range(2):
        p(f's_add_u32 m0, s63, {12288*(1+blk)}')
        if blk:
            p(f's_add_u32 s39, s39, {32*1152}')
        for n in range(3):
            p(f'buffer_load_dwordx4 v{16+n}, {sFW}, s39 offen offset:{1024*n} {o.f_flav} lds')
    p(f'''s_branch {lj}
    {lb}:
    s_mul_i32 s39, s3, {48*384}
    s_lshl_b32 s40, s37, 7
    s_add_u32 s39, s39, s40
    s_mul_i32 s40, s3, 6144''')
    for n in range(6):
        p(f's_add_u32 m0, s40, {12288+1024*n}')
        p(f'buffer_load_dwordx4 v{19+(n&1)}, {sFO}, s39 offen {o.f_flav} lds')
        p(f's_add_u32 s39, s39, {8*384}')
    p(f'''{lj}:
    v_mov_b64 v[12:13], 0
    v_mov_b64 v[14:15], 0
    s_lshl_b32 s39, s32, 10
    s_add_u32 s39, s39, {WS_FL}
    v_lshlrev_b32 v10, 2, v0
    buffer_store_dword v12, v10, {sWS}, s39 offen sc1
    v_lshrrev_b32 v8, 2, v{II}
    v_and_b32 v9, 3, v{II}
    v_lshl_add_u32 v8, v8, 3, v9''')
    for ab in range(2):
        p(f'''v_add_u32 v9, {4*ab}, v8
        {phi16(11, 9, 12)}
        v_lshlrev_b32 v12, 4, v{GG}
        v_mul_u32_u24 v9, 384, v9
        v_xad_u32 v{40+2*ab}, v12, v11, v9
        v_xor_b32 v{41+2*ab}, 64, v{40+2*ab}''')
    p(f'''s_and_b32 s39, s3, 1
    s_lshl_b32 s39, s39, 4
    v_add_u32 v9, s39, v{II}
    {phi16(11, 9, 12)}
    v_lshlrev_b32 v12, 4, v{GG}
    v_mul_u32_u24 v9, 384, v9
    s_lshr_b32 s39, s3, 1
    s_mul_i32 s39, s39, 12288
    s_add_u32 s39, s39, 12288
    v_add_u32 v9, s39, v9
    v_xad_u32 v44, v12, v11, v9
    v_xor_b32 v45, 64, v44
    v_lshrrev_b32 v8, 2, v{II}
    v_lshl_add_u32 v8, v{GG}, 3, v8
    v_lshlrev_b32 v8, 7, v8
    v_lshrrev_b32 v9, 3, v{II}
    v_and_b32 v11, 1, v{GG}
    v_lshl_add_u32 v9, v11, 1, v9
    v_xor_b32 v9, s3, v9
    v_lshl_add_u32 v8, v9, 5, v8
    v_and_b32 v9, 3, v{II}
    v_lshl_add_u32 v8, v9, 3, v8
    v_add_u32 v46, 12288, v8
    s_lshl_b32 s38, s37, 2
    s_add_u32 s38, s38, s3
    s_mul_i32 s38, s38, 6144
    s_lshl_b32 s39, s36, 10
    s_add_u32 s38, s38, s39
    s_waitcnt vmcnt(1)
    s_barrier''')
    fs(p, 'loaded')
    for kd in range(6):
        for ab in range(2):
            p(f'ds_read_b128 {vr(A0+24*ab+4*kd,4)}, v{40+2*ab+(kd&1)} offset:{128*(kd>>1)}')
    p(f'''s_cmp_ge_u32 s32, 18
    s_cbranch_scc1 {lb2}''')
    for kd in range(6):
        p(f'ds_read_b128 {vr(B0+4*kd,4)}, v{44+(kd&1)} offset:{128*(kd>>1)}')
    p(f'''s_add_u32 s38, s38, {WS_AF}
    s_mov_b32 s40, {fbits(SCALE_LOG2E)}
    s_waitcnt lgkmcnt(0)
    s_branch {lj2}
    {lb2}:''')
    for kd in range(6):
        for u in range(2):
            p(f'ds_read_b64_tr_b16 {vr(B0+4*kd+2*u,2)}, v46 offset:{4096*kd+512*u}')
    p(f'''s_add_u32 s38, s38, {WS_BF}
    s_mov_b32 s40, 1.0
    s_waitcnt lgkmcnt(0)
    {lj2}:''')
    for kd in range(6):
        for ab in range(2):
            acc = ACC + 4 * ab
            p(f'v_mfma_f32_16x16x32_bf16 {vr(acc,4)}, {vr(A0+24*ab+4*kd,4)}, {vr(B0+4*kd,4)}, {vr(acc,4) if kd else 0}')
    for k in range(8):
        p(f'v_mul_f32 v{ACC+k}, s40, v{ACC+k}')
    for k in range(4):
        p(f'v_cvt_pk_bf16_f32 v{48+k}, v{ACC+2*k}, v{ACC+2*k+1}')
    p(f'buffer_store_dwordx4 v[48:51], v{L16}, {sWS}, s38 offen {o.st_flav}')
    fs(p, 'stored')
    p(f'''v_cmp_eq_u32 vcc, 0, v0
    v_mov_b32 v10, {OOB}
    v_mov_b32 v11, 1
    v_cndmask_b32 v10, v10, v0, vcc
    s_waitcnt vmcnt(0)''')
    fs(p, 'acked')
    p(f'''s_barrier
    buffer_atomic_add v11, v10, {sDBG}, 0 offen sc1''')
    if fs.on:
        p('s_waitcnt vmcnt(0)')
    fs(p, 'flagged')
    fs.flush(p, WS_STAMP)
    p('s_endpgm')


def dma_tile(i, o):
    slot = i % 3
    v = R.DMA5 if i == 5 else R.DMA
    out = []
    for G in range(4):
        out += [f's_add_u32 m0, s{R.sLDS}, {slot*TILE + G*3072}', f's_add_u32 s53, s{R.sTILE+i}, s{R.sROT+G}']
        out += [(f'buffer_load_dwordx4 v{v}, {sWS}, s53 offen offset:{k*1024} {o.ld_flav} lds', f'tile{i}g{G}') for k in range(3)]
    return out


def group_dma(items):
    out, cur = [], []
    for x in items:
        cur.append(x)
        if isinstance(x, tuple):
            out.append(cur)
            cur = []
    return out


def softmax_ops(i, sub):
    S, P = R.S[i & 1], R.P[i & 1]
    res, pend = [], []
    for k in range(0, 16, 2):
        t0, t1 = R.T + (k % 8), R.T + (k % 8) + 1
        if sub:
            res.append(f'v_sub_f32 v{S+k}, v{S+k}, v{R.MREF}')
            res.append(f'v_sub_f32 v{S+k+1}, v{S+k+1}, v{R.MREF}')
        res.append(f'v_exp_f32 v{t0}, v{S+k}')
        res += pend
        res.append(f'v_exp_f32 v{t1}, v{S+k+1}')
        pend = [f'v_add_f32 v{R.LT}, v{t0}, v{t1}'] if k == 0 else [f'v_add_f32 v{R.LT}, v{R.LT}, v{t0}', f'v_add_f32 v{R.LT}, v{R.LT}, v{t1}']
        pend.append(f'v_cvt_pk_bf16_f32 v{P+k//2}, v{t0}, v{t1}')
    return res + pend


def max_ops(S, dst):
    ops = [f'v_max3_f32 v{dst}, v{S}, v{S+1}, v{S+2}']
    for k in range(3, 15, 2):
        ops.append(f'v_max3_f32 v{dst}, v{dst}, v{S+k}, v{S+k+1}')
    ops += [f'v_max_f32 v{dst}, v{dst}, v{S+15}', f'v_mov_b32 v{R.TMP}, v{dst}',
            f'v_permlane32_swap_b32 v{R.TMP}, v{dst}', f'v_max_f32 v{dst}, v{dst}, v{R.TMP}']
    return ops


def cost(t):
    return 2 if isinstance(t, str) and (t.startswith('v_exp') or t.startswith('v_permlane') or t.startswith('v_rcp')) else 1


def spread(ops, gaps, load):
    tot = sum(cost(x) for x in ops) + sum(load[g] for g in gaps)
    per = tot / len(gaps)
    out, k, acc = [], 0, 0.0
    for n, g in enumerate(gaps):
        acc += per - load[g]
        while k < len(ops) and (acc >= cost(ops[k]) - 0.5 or n == len(gaps) - 1):
            out.append((g, ops[k]))
            acc -= cost(ops[k])
            load[g] += cost(ops[k])
            k += 1
    return out


RL = 238


def pack_ops(mt):
    c = []
    for gp in ((2 * mt, 2 * mt + 1) if mt > 1 else (3,)):
        d = R.S[0] + 4 * (gp % 8)
        src = R.O + 8 * gp
        c += [f'v_cvt_pk_f16_f32 v{d+k}, v{src+2*k}, v{src+2*k+1}' for k in range(4)]
        c.append(f'ds_write_b128 v{R.WO}, {vr(d,4)} offset:{1024*gp}')
    return c


def front_fill(ops, gaps, load, cap):
    while True:
        out, k, ld = [], 0, dict(load)
        for q in gaps:
            while k < len(ops) and ld[q] + cost(ops[k]) <= cap:
                out.append((q, ops[k]))
                ld[q] += cost(ops[k])
                k += 1
        if k == len(ops):
            load.update(ld)
            return out
        cap += 1


def main_loop(p, o, early_dma, late_loads, cold, qrd, st):
    NT, D, W = 6, o.D, o.W
    seq = [('qk', 0), ('qk', 1)]
    for i in range(NT):
        seq.append(('pv', i))
        if i + 2 < NT:
            seq.append(('qk', i + 2))
    mf, reads, start = [], [], {}
    for (k, i) in seq:
        start[(k, i)] = len(mf)
        slot = i % 3
        for n in range(12):
            f = R.FR + 4 * (len(mf) % R.NFR)
            if k == 'qk':
                S = R.S[i & 1]
                c = vr(S, 16) if n else ('0' if i < 2 else vr(R.NEG, 16))
                mf.append(f'v_mfma_f32_32x32x16_bf16 {vr(S,16)}, {ar(f,4)}, {ar(R.Q+4*n,4)}, {c}')
                reads.append([(f'ds_read_b128 {ar(f,4)}, v{R.K[n&1]} offset:{slot*TILE + 1024*n}', f'tile{i}g{n//3}')])
            else:
                mt, s = divmod(n, 2)
                if i == NT - 1:
                    mt = 5 - mt
                a = R.O + 16 * mt
                c = vr(a, 16) if (i or s) else '0'
                mf.append(f'v_mfma_f32_32x32x16_bf16 {vr(a,16)}, {ar(f,4)}, {vr(R.P[i&1]+4*s,4)}, {c}')
                reads.append([(f'ds_read_b64_tr_b16 {ar(f+2*u,2)}, v{R.V[u]} offset:{slot*TILE + 2048*mt + 512*s + 256*u}', None) for u in range(2)])
    n_mf = len(mf)
    mem = {g: [] for g in range(-1, n_mf)}
    alu = {g: [] for g in range(-1, n_mf)}
    load = {g: 0.0 for g in range(-1, n_mf)}
    for k in range(D, 12):
        mem[k - D].append(qrd[k])
        load[k - D] += 1
    for n in range(n_mf):
        g = max(n - D, -1)
        for (t, w) in reads[n]:
            if w is not None and n % 3 == 0:
                mem[g].append(lambda p, w=w: p.wait_tag(w))
                load[g] += 1
            mem[g].append(t)
            load[g] += 1
        if n % W == W - 1:
            load[n] += 1
    last = [-1]

    def place(it, g):
        if len(it) > 1:
            q = g - 1 if g - 1 > last[0] else g
            mem[q] += it[:-1]
            load[q] += len(it) - 1
        mem[g].append(it[-1])
        load[g] += 1
        last[0] = g
    ed = group_dma(early_dma)
    for k, it in enumerate(ed):
        g = k if k < len(ed) - 12 else (len(ed) - 12) + ((k - len(ed) + 12) * (o.e_span - len(ed) + 12)) // 12
        place(it, g)
    g += 2
    for i in range(NT - 3):
        for b, it in enumerate(group_dma(dma_tile(i + 3, o))):
            g = max(g, start[('pv', i)] + 2 * (b // 2) + 1)
            place(it, g)
            g += 2
    step = (start[('pv', NT - 1 - o.late_end)] - 1 - g) / len(late_loads)
    for k, it in enumerate(late_loads):
        place([it], g + int(k * step))

    def rare_cb(p, i):
        lab, back = p.label('L_resc'), p.label('L_rescb')
        p(f's_cbranch_vccnz {lab}\n{back}:')
        S, S2 = R.S[i & 1], R.S[(i + 1) & 1]
        dl, f = R.TMP + 2, R.TMP + 3
        c = [f'{lab}:', 's_nop 15', 's_nop 7'] + max_ops(S, dl)
        if i:
            c += [f'v_max_f32 v{dl}, 0, v{dl}']
        c += [f'v_add_f32 v{R.MREF}, v{R.MREF}, v{dl}', f'v_exp_f32 v{f}, -v{dl}']
        c += [f'v_sub_f32 v{R.NEG+k}, 0, v{R.MREF}' for k in range(16)]
        c += [f'v_sub_f32 v{S+k}, v{S+k}, v{dl}' for k in range(16)]
        if i + 1 < NT:
            c += [f'v_sub_f32 v{S2+k}, v{S2+k}, v{dl}' for k in range(16)]
        if i:
            c += [f'v_mul_f32 v{R.L}, v{R.L}, v{f}']
            c += [f'v_mul_f32 v{R.O+k}, v{R.O+k}, v{f}' for k in range(96)]
        c += softmax_ops(i, False) + ['s_nop 1', f's_branch {back}']
        cold.append(c)

    init = [f'v_mov_b32 v{R.MREF}, 0', f'v_mov_b32 v{R.TMP+4}, {fbits(0.25)}', f'v_mov_b32 v{R.TMP+1}, {fbits(256.0)}'] + [f'v_mov_b32 v{R.NEG+k}, 0' for k in range(16)]
    for g, x in front_fill(init, list(range(0, 12)), load, o.cap):
        alu[g].append(x)
    for i in range(NT):
        load[start[('pv', i)] - 1] += 1
        load[start[('pv', i)]] += 1
    bias = [f'v_cmp_lt_u32 s[76:77], 31, v{LANE}'] + [f'v_add_f32 v{R.NEG+k}, s{48 if k < 13 else 49}, v{R.NEG+k}' for k in range(16)]
    bias += [f'v_add_f32 v{R.TMP}, s49, v{R.NEG+12}', f'v_cndmask_b32 v{R.NEG+12}, v{R.NEG+12}, v{R.TMP}, s[76:77]']
    for g, x in front_fill(bias, list(range(start[('pv', 3)], start[('pv', 3)] + 11)), load, o.cap):
        alu[g].append(x)
    for i in range(NT):
        ops = softmax_ops(i, False)
        if i == 0:
            ops += [f'v_med3_f32 v{R.TMP}, v{R.LT}, v{R.TMP+1}, v{R.TMP+4}', f'v_cmp_neq_f32 vcc, v{R.LT}, v{R.TMP}']
        else:
            ops += [f'v_cmp_nle_f32 vcc, v{R.LT}, v{R.TMP+1}']
        g0 = (start[('qk', 1)] if i == 0 else start[('pv', i - 1)]) + o.g0
        g1 = start[('pv', i)] - 1
        for g, x in front_fill(ops, list(range(g0, g1 + (1 if i in (0, NT - 1) else 0))), load, o.cap):
            alu[g].append(x)
        alu[g1].append(lambda p, i=i: rare_cb(p, i))
        alu[g1 + 1].append(f'v_add_f32 v{R.L}, v{R.L}, v{R.LT}' if i else f'v_mov_b32 v{R.L}, v{R.LT}')
    g = start[('pv', NT - 1)]
    alu[g] += [f'v_mov_b32 v{R.TMP}, v{R.L}']
    alu[g + 1] += [f'v_permlane32_swap_b32 v{R.TMP}, v{R.L}', f'v_add_f32 v{R.MREF+1}, v{R.L}, v{R.TMP}']
    mem[g + 2].insert(0, (f'ds_write_b64 v{R.WMS}, {vr(R.MREF,2)}', 'ms'))
    for q, n in ((0, 1), (1, 3), (2, 1)):
        load[g + q] += n
    if o.ms_bar:
        mem[g + o.ms_bar] = [lambda p: p.wait_tag('ms'), 's_barrier'] + [f'ds_read_b64 {vr(224+2*d,2)}, v{R.RMS+d}' for d in range(3)] + mem[g + o.ms_bar]
        load[g + o.ms_bar] += 5
    rest = []
    for mt in (5, 4, 3, 2, 1):
        q = g + 2 * (5 - mt) + 3
        for x in pack_ops(mt):
            if x.startswith('ds_'):
                if q + 1 < g + 12 and not rest:
                    mem[q + 1].insert(0, x)
                    load[q + 1] += 1
                else:
                    rest.append(x)
                continue
            while q < g + 12 and load[q] >= o.cap_tail:
                q += 1
            if q < g + 12 and not rest:
                alu[q].append(x)
                load[q] += 1
            else:
                rest.append(x)
    head = []
    kr = [x for x in mem[-1] if isinstance(x, str)]
    head.append(mem[-1][0])
    for n in range(D):
        head += [qrd[n]] + ([mem[-1][mem[-1].index(kr[n]) - 1]] if n and n % 3 == 0 else []) + [kr[n]]
    run(p, head)
    for n in range(n_mf):
        if n % W == 0 and W > 1:
            p(f'@touch a{R.FR + 4*(min(n+W-1, n_mf-1) % R.NFR) + 3}')
        p(mf[n])
        if n % 12 == 0:
            st(p, f'L{n//12}')
        run(p, mem[n] + alu[n])
    return rest


def gemm16(acc, w, init):
    mf = []
    for mt in range(3):
        mf.append([f'v_mfma_f32_16x16x32_bf16 {vr(acc+8*mt+4*nt,4)}, {ar(w+24*mt+4*ks,4)}, {ar(HF+24*nt+4*ks,4)}, {vr(acc+8*mt+4*nt,4) if (ks or init) else 0}'
                   for ks in range(6) for nt in range(2)])
    return mf


def phase_s(p, o, st, cold):
    RP, STT = 208, 252
    if o.qdiag:
        p(f's_add_u32 m0, s63, {L_QB}')
        for k in range(3):
            p(f'buffer_load_dwordx4 v{R.DMA}, {sWS}, s{R.sQSRC} offen offset:{1024*k} {o.ld_flav} lds', tag='q')
        if o.qdiag == 2:
            p.wait_tag('q'); st(p, 'dq')
        run(p, dma_tile(0, o)[:15])
        st(p, 'i0')
        if o.qdiag == 1:
            p.wait_tag('q'); st(p, 'dq')
        run(p, dma_tile(0, o)[15:] + dma_tile(1, o)[:10])
        st(p, 'i1')
        p.wait_tag('tile0g3'); st(p, 'd0')
        run(p, dma_tile(1, o)[10:] + dma_tile(2, o)[:10])
        p.wait_tag('tile1g3'); st(p, 'd1')
        run(p, dma_tile(2, o)[10:])
        p.wait_tag('tile2g3'); st(p, 'd2')
        p('s_branch L_fin')
    p(f's_add_u32 m0, s63, s75')
    for k in range(3):
        p(f'buffer_load_dwordx4 v{R.DMA}, {sWS}, s{R.sQSRC} offen offset:{1024*k} {o.ld_flav} lds')
    skip, join = p.label('L_skip0'), p.label('L_join0')
    p(f's_cmp_eq_u32 s39, 0\ns_cbranch_scc1 {skip}')
    q = Prog()
    run(q, dma_tile(0, o))
    for i in q.ins:
        i.cond = True
        p.ins.append(i)
    p(f'''@raw s_waitcnt vmcnt(12)
    s_branch {join}
    {skip}:
    @raw s_waitcnt vmcnt(0)
    {join}:
    s_barrier''')
    st(p, 'Q0')
    r = Region()
    r.chain, r.alive, r.stamp, r.name = o.chain, o.alive, st, 'QQ'
    d1 = dma_tile(1, o)
    r.run(d1[:5 * o.n_t1], hi=-1)
    r.run([f'ds_read_b128 {ar(HF+24*nt+4*ks,4)}, v{R.WQP+6 if nt else R.HQ} offset:{2048*ks}' for ks in range(6) for nt in range(2)])
    r.run([f'ds_read_b64 {vr(RP+4*mt+2*nt,2)}, v{R.RES+(mt&1)} offset:{1024*mt+512*nt}' for mt in range(3) for nt in range(2)])
    mf = gemm16(QA, AFR, False)
    for mt in range(3):
        r.run(mf[mt])
        for nt in range(2):
            r.run(cvt4(KA + 4 * mt + 2 * nt, QA + 8 * mt + 4 * nt))
            r.add(f'ds_write_b64 v{R.WQP+mt}, {vr(KA+4*mt+2*nt,2)} offset:{3072*nt}')
    for mt in range(3):
        for nt in range(2):
            a, s = R.FA + 8 * mt + 4 * nt, RP + 4 * mt + 2 * nt
            r.run([f'v_lshlrev_b32 v{a}, 16, v{s}', f'v_and_b32 v{a+1}, 0xffff0000, v{s}',
                   f'v_lshlrev_b32 v{a+2}, 16, v{s+1}', f'v_and_b32 v{a+3}, 0xffff0000, v{s+1}'])
    r.barrier()
    r.occ = o.occ_s
    r.schedule(p, passes=o.passes, t0=0, vlat=o.vlat_s, vqd=o.vqd, ta0=o.ta_s, block=True)
    st(p, 'qprime')
    qrd = [f'ds_read_b128 {ar(R.Q+4*k,4)}, v{R.RQ+k}' for k in range(12)]
    stat = [(f'buffer_load_dwordx2 {vr(STT+2*nt,2)}, v{R.GSTAT}, {sWS}, s{R.sSTAT} offen offset:{1024*nt} {o.ld_flav}', 'stat') for nt in range(2)]
    rest = main_loop(p, o, d1[5 * o.n_t1:] + dma_tile(2, o), stat + ab_loads(o)[18 + o.nb_pre:], cold, qrd, st)
    st(p, 'loop')
    r = Region()
    r.chain, r.alive, r.stamp, r.name = o.chain, o.alive, st, 'E'
    r.run(rest)
    if not o.ms_bar:
        r.barrier('lds_all')
        for d in range(3):
            r.add(f'ds_read_b64 {vr(224+2*d,2)}, v{R.RMS+d}', hi=-1)
    M = 230
    r.run(lines(f'''v_max3_f32 v{M}, v{R.MREF}, v224, v226
    v_max_f32 v{M}, v{M}, v228
    v_sub_f32 v{R.MREF}, v{R.MREF}, v{M}
    v_sub_f32 v224, v224, v{M}
    v_sub_f32 v226, v226, v{M}
    v_sub_f32 v228, v228, v{M}
    v_exp_f32 v{R.MREF}, v{R.MREF}
    v_exp_f32 v224, v224
    v_exp_f32 v226, v226
    v_exp_f32 v228, v228
    v_mul_f32 v{M}, v{R.MREF}, v{R.MREF+1}
    v_fmac_f32 v{M}, v224, v225
    v_fmac_f32 v{M}, v226, v227
    v_fmac_f32 v{M}, v228, v229
    v_rcp_f32 v{M}, v{M}
    v_mul_f32 v{R.MREF}, v{R.MREF}, v{M}
    v_mul_f32 v224, v224, v{M}
    v_mul_f32 v226, v226, v{M}
    v_mul_f32 v228, v228, v{M}'''))
    for k in range(12):
        r.add(f'v_pk_mul_f32 {vr(R.O+2*k,2)}, {vr(R.O+2*k,2)}, {vr(R.MREF,2)} op_sel_hi:[1,0]')
    for mt in range(3):
        for nt in range(2):
            for h in range(2):
                a = R.FA + 8 * mt + 4 * nt + 2 * h
                r.add(f'v_pk_fma_f32 {vr(a,2)}, {vr(a,2)}, {vr(252+2*nt,2)}, {vr(252+2*nt,2)} op_sel:[0,1,0] op_sel_hi:[1,1,0]')
    if o.ms_bar:
        r.barrier('lds_all')
    for k in range(3):
        for d in range(3):
            r.add(f'ds_read_b128 {vr(R.O+24+12*d+4*k,4)}, v{R.RO+d} offset:{1024*(3*(d+1)+k)}', hi=-1)
    for gi in range(6):
        for d in range(3):
            for k in range(4):
                r.add(f'v_fma_mix_f32 v{R.O+4*gi+k}, v{R.O+24+12*d+2*gi+k//2}, v{224+2*d}, v{R.O+4*gi+k} op_sel:[{k&1},0,0] op_sel_hi:[1,0,0]')
        r.run(cvt4(160 + 2 * gi, R.O + 4 * gi))
        r.add(f'ds_write_b64 v{R.WOB+gi}, {vr(160+2*gi,2)}')
    r.barrier()
    r.run([x for ks in range(6) for x in frag_reads(R.RF, ks, 12288)], hi=-1)
    mf = gemm16(R.FA, BFR, True)
    for mt in range(3):
        r.run(mf[mt])
        for nt in range(2):
            r.run(cvt4(176 + 4 * mt + 2 * nt, R.FA + 8 * mt + 4 * nt))
            r.add(f'ds_write_b64 v{R.WQ+2*mt+nt}, {vr(176+4*mt+2*nt,2)}')
    r.barrier()
    for b in range(3):
        r.add(f'ds_read_b128 {vr(R.O+4*b,4)}, v{R.RY} offset:{128*b}', hi=-1)
    for b in range(3):
        r.add(f'buffer_store_dwordx4 {vr(R.O+4*b,4)}, v{R.GOUT}, {sOUT}, 0 offen offset:{128*b} {o.out_flav}')
    r.schedule(p, passes=o.passes, t0=0, vlat=o.vlat, warm=True)
    st(p, 'out')


def build(o):
    hdr = open('standalone__video_timesformer__vision.s.ref').read().split('; Override')[0]
    p = Prog()
    st = Stamps(o)
    cold = []
    st(p, 'start')
    setup(p, o)
    fq = phase_t(p, o, st)
    grid_sync(p, o, st, fq)
    phase_s(p, o, st, cold)
    if o.echo:
        a, b, mult = o.echo
        ia, ib = 80 + 2 * st.names.index(a), 80 + 2 * st.names.index(b)
        p(f'''s_waitcnt vmcnt(0)
        s_memrealtime s[32:33]
        s_waitcnt lgkmcnt(0)
        s_sub_u32 s34, s{ib}, s{ia}
        s_mul_i32 s34, s34, {mult}
        s_min_u32 s34, s34, 20000
        L_echo:
        s_memrealtime s[36:37]
        s_waitcnt lgkmcnt(0)
        s_sub_u32 s36, s36, s32
        s_cmp_lt_u32 s36, s34
        s_cbranch_scc1 L_echo''')
        st.on = False
    p('L_fin:')
    st.flush(p, WS_STAMP)
    p('L_end:\ns_endpgm\nL_fold:')
    p.fresh()
    fold(p, o)
    p('L_hot_end:')
    for c in cold:
        p.fresh()
        run(p, c)
    txt = p.text(base=0x300, pages=o.pages, align=o.align, stop='L_fin')
    name = 'standalone__video_timesformer__vision_kernel'
    return module([(name, txt, 512, 102, 256)], [(name, NMAIN + NFOLD, 256, LDS_BYTES)], hdr), dict(stats=p.stats, stamps=st.names)


def make(path, **kw):
    o = Opt()
    for k, v in kw.items():
        setattr(o, k, v)
    txt, info = build(o)
    open(path, 'w').write(txt)
    return info


if __name__ == '__main__':
    print(make('k4.s'))
```

```python
class Asm:
    def __init__(self):
        self.lines = []
        self.nlabel = 0
    def __call__(self, s):
        for l in s.split('\n'):
            l = l.strip()
            if l:
                self.lines.append(l if l.endswith(':') else '    ' + l)
    def label(self, base='L'):
        self.nlabel += 1
        return f'{base}_{self.nlabel}'
    def text(self):
        return '\n'.join(self.lines) + '\n'

HEAD = '''.amdgcn_target "amdgcn-amd-amdhsa--gfx950"
.text
.p2align 12
'''
def kernel_text(name, body, vgpr, sgpr, accum):
    return f'''.globl {name}
.p2align 8
.type {name},@function
{name}:
{body}'''
def kernel_desc(name, vgpr, sgpr, accum, extra=''):
    return f'''.p2align 6
.amdhsa_kernel {name}
  .amdhsa_next_free_vgpr {vgpr}
  .amdhsa_next_free_sgpr {sgpr}
  .amdhsa_accum_offset {accum}
  .amdhsa_group_segment_fixed_size 0
  .amdhsa_kernarg_size 64
  .amdhsa_user_sgpr_count 2
  .amdhsa_user_sgpr_kernarg_segment_ptr 1
  .amdhsa_system_sgpr_workgroup_id_x 1
{extra}.end_amdhsa_kernel
'''
def module(kernels, launches, header=''):
    s = header
    for (n, g, b, lds) in launches:
        if len(launches) == 1 and n == 'standalone__video_timesformer__vision_kernel':
            s += f'; @launch grid=({g},1,1) block=({b},1,1) lds={lds}\n'
        else:
            s += f'; @launch kernel={n} grid=({g},1,1) block=({b},1,1) lds={lds}\n'
    s += HEAD
    for k in kernels:
        s += kernel_text(*k[:5])
    s += '.section .rodata,"a"\n'
    for k in kernels:
        s += kernel_desc(k[0], k[2], k[3], k[4], k[5] if len(k) > 5 else '')
    return s
```
